```python
import torch

def _softmax(x, axis=-1):
    return torch.softmax(x, dim=axis)
def _gelu(x):
    return torch.nn.functional.gelu(x, approximate="tanh")
def _silu(x):
    return torch.nn.functional.silu(x)
def _sigmoid(x):
    return torch.sigmoid(x)
def _layernorm(x, axis=-1, eps=1e-5):
    m = x.mean(dim=axis, keepdim=True)
    v = x.var(dim=axis, keepdim=True, unbiased=False)
    return (x - m) / torch.sqrt(v + eps)
def _scatter_add(tgt, idx, src, axis=0):
    return tgt.clone().index_add_(axis, idx, src)
def _segment_sum(src, seg, n):
    out = torch.zeros((n,) + src.shape[1:], dtype=src.dtype)
    return out.index_add_(0, seg, src)
def _pad(x, pw):
    flat = tuple(v for pair in reversed(pw) for v in pair)
    return torch.nn.functional.pad(x, flat)

kernel_name = 'gated_mix__ssm_conv_s4__linear_attn_block__prompt'

def setup_inputs():

    _w = (lambda a: (lambda t: t.to(torch.bfloat16) if t.is_floating_point() else t)(torch.as_tensor(a)))
    def _A_setup():
        B, L, D, N = 1, 2048, 512, 128
        A_re = -(lambda _x: torch.exp(torch.as_tensor(_x)))((lambda *s: torch.randn(*s, dtype=torch.bfloat16) * 6.4)(D, N))
        A_im = torch.pi * (lambda *s: torch.randn(*s, dtype=torch.bfloat16) * 0.05)(D, N)
        B_re = (lambda *s: torch.randn(*s, dtype=torch.bfloat16) * 0.2)(D, N)
        B_im = (lambda *s: torch.randn(*s, dtype=torch.bfloat16) * 0.2)(D, N)
        C_re = (lambda *s: torch.randn(*s, dtype=torch.bfloat16) * 0.2)(D, N)
        C_im = (lambda *s: torch.randn(*s, dtype=torch.bfloat16) * 0.2)(D, N)
        log_dt = (lambda *s: torch.randn(*s, dtype=torch.bfloat16) * 0.05)(D) * 0.5 - 4.0
        Dskip = (lambda *s: torch.randn(*s, dtype=torch.bfloat16) * 0.05)(D)
        return {
            "u": _w((lambda *s: torch.randn(*s, dtype=torch.bfloat16) * 0.05)(B, L, D)),
            "A_re": _w(A_re),
            "A_im": _w(A_im),
            "B_re": _w(B_re),
            "B_im": _w(B_im),
            "C_re": _w(C_re),
            "C_im": _w(C_im),
            "log_dt": _w(log_dt),
            "Dskip": _w(Dskip),
        }
    _A_in = _A_setup()

    def _B_setup():
        B, S, D = 1, 2048, 512
        return {
            "x": _w((lambda *s: torch.randn(*s, dtype=torch.bfloat16) * 0.05)(B, S, D)),
            "wqkv": _w((lambda *s: torch.randn(*s, dtype=torch.bfloat16) * 0.8)(D, 3 * D)),
            "wo": _w((lambda *s: torch.randn(*s, dtype=torch.bfloat16) * 0.05)(D, D)),
        }
    _B_in = _B_setup()

    return {
        "A_u": _A_in["u"],
        "A_A_re": _A_in["A_re"],
        "A_A_im": _A_in["A_im"],
        "A_B_re": _A_in["B_re"],
        "A_B_im": _A_in["B_im"],
        "A_C_re": _A_in["C_re"],
        "A_C_im": _A_in["C_im"],
        "A_log_dt": _A_in["log_dt"],
        "A_Dskip": _A_in["Dskip"],
        "B_x": _B_in["x"],
        "B_wqkv": _B_in["wqkv"],
        "B_wo": _B_in["wo"],
        "gate_w": _w((lambda *s: torch.randn(*s, dtype=torch.bfloat16) * 0.05)(512) * 16.0),
    }

def reference(A_u, A_A_re, A_A_im, A_B_re, A_B_im, A_C_re, A_C_im, A_log_dt, A_Dskip, B_x, B_wqkv, B_wo, gate_w):
    def _A_ref(u, A_re, A_im, B_re, B_im, C_re, C_im, log_dt, Dskip):
        Bsz, L, D = u.shape
        dt = torch.exp(log_dt)[:, None]
        A = A_re + 1j * A_im
        Bc = B_re + 1j * B_im
        Cc = C_re + 1j * C_im
        logdA = dt * A
        dB = dt * Bc
        l = (lambda x, dt: x.to(dt))(torch.arange(L), A_re.dtype)
        P = torch.exp(logdA[:, :, None] * l[None, None, :])
        K = torch.einsum("dn,dnl,dn->dl", Cc, P, dB).real
        L2 = 2 * L
        Kp = _pad(K, ((0, 0), (0, L)))
        up = (lambda x, *d: x.permute(*d))(u, 0, 2, 1)
        up = _pad(up, ((0, 0), (0, 0), (0, L)))
        Kf = (lambda x, axes=(-2,-1): torch.fft.rfft2(x.float(), dim=axes))(Kp[:, None, :], axes=(-2, -1))
        Uf = (lambda x, axes=(-2,-1): torch.fft.rfft2(x.float(), dim=axes))(up[:, :, None, :], axes=(-2, -1))
        Yf = Uf * Kf[None, :, :, :]
        y = (lambda x, s, axes=(-2,-1): torch.fft.irfft2(x, s=s, dim=axes).to(torch.bfloat16))(Yf, (1, L2), axes=(-2, -1))[:, :, 0, :L]
        y = (lambda x, *d: x.permute(*d))(y, 0, 2, 1) + u * Dskip[None, None, :]
        return y

    def _B_ref(x, wqkv, wo):
        B, S, D = x.shape
        H = 32; Dh = D // H
        qkv = (lambda x, *d: x.permute(*d))((x @ wqkv).reshape(B, S, 3, H, Dh), 2, 0, 3, 1, 4)
        q, k, v = qkv[0], qkv[1], qkv[2]
        phi = lambda t: torch.where(t > 0, t + 1, torch.exp(t)) + 1e-6
        pq, pk = phi(q), phi(k)
        kv = torch.einsum("bhsd,bhse->bhde", pk, v)
        z = torch.einsum("bhsd->bhd", pk)
        num = torch.einsum("bhqd,bhde->bhqe", pq, kv)
        den = torch.einsum("bhqd,bhd->bhq", pq, z)[..., None] + 1e-6
        o = num / den
        return (lambda x, *d: x.permute(*d))(o, 0, 2, 1, 3).reshape(B, S, D) @ wo

    x = A_u
    g = _sigmoid((x * gate_w).sum(-1, keepdims=True))
    a = _A_ref(x, A_A_re, A_A_im, A_B_re, A_B_im, A_C_re, A_C_im, A_log_dt, A_Dskip)
    b = _B_ref(x, B_wqkv, B_wo)
    return g * a + (1 - g) * b
```

```python
import sys
sys.path.insert(0, "dev")
import hz
KN = "gated_mix__ssm_conv_s4__linear_attn_block__prompt"
class A:
    def __init__(self):
        self.l = []
        self.lds_q = []
    def __call__(self, s=""):
        for x in s.split("\n"):
            self.l.append(x)
    def text(self, fix=True):
        if fix:
            o, n = hz.fix(self.l)
            return "\n".join(o) + "\n"
        return "\n".join(self.l) + "\n"
    def lds(self, instr, tag=None):
        self(instr); self.lds_q.append(tag)
    def lds_wait(self, tags):
        if tags is None:
            if self.lds_q: self("s_waitcnt lgkmcnt(0)")
            self.lds_q = []; return
        if not isinstance(tags, (list, tuple, set)): tags = [tags]
        last = -1
        for i, t in enumerate(self.lds_q):
            if t in tags: last = i
        if last < 0: return
        n = len(self.lds_q) - 1 - last
        n = min(n, 15)
        self(f"s_waitcnt lgkmcnt({n})")
        self.lds_q = self.lds_q[len(self.lds_q) - n:] if n > 0 else []
    def lds_reset(self): self.lds_q = []
def v(i, n=1): return f"v{i}" if n == 1 else f"v[{i}:{i+n-1}]"
def s(i, n=1): return f"s{i}" if n == 1 else f"s[{i}:{i+n-1}]"
def kernel_begin(a, name):
    a(".text"); a(f".globl {name}"); a(".p2align 8"); a(f".type {name},@function"); a(f"{name}:")
def kernel_desc(a, name, vgpr, sgpr, accum=None, extra=""):
    if accum is None: accum = (vgpr + 3) // 4 * 4
    a('.section .rodata,"a"'); a(".p2align 6"); a(f".amdhsa_kernel {name}")
    a(f"  .amdhsa_next_free_vgpr {vgpr}"); a(f"  .amdhsa_next_free_sgpr {sgpr}"); a(f"  .amdhsa_accum_offset {accum}")
    a("  .amdhsa_group_segment_fixed_size 0"); a("  .amdhsa_kernarg_size 128"); a("  .amdhsa_user_sgpr_count 2")
    a("  .amdhsa_user_sgpr_kernarg_segment_ptr 1"); a("  .amdhsa_system_sgpr_workgroup_id_x 1")
    a("  .amdhsa_float_denorm_mode_32 3"); a("  .amdhsa_float_denorm_mode_16_64 3")
    if extra: a(extra)
    a(".end_amdhsa_kernel")
def file_begin(a, launches):
    for (n, g, b, lds) in launches:
        a(f"; @launch kernel={n} grid=({g},1,1) block=({b},1,1) lds={lds}")
    a('.amdgcn_target "amdgcn-amd-amdhsa--gfx950"')
def srd(a, sd, karg_off, nbytes, tmp=None):
    a(f"s_load_dwordx2 s[{sd}:{sd+1}], s[0:1], {karg_off}")
def srd_fin(a, sd, nbytes):
    a(f"s_mov_b32 s{sd+2}, {nbytes}"); a(f"s_mov_b32 s{sd+3}, 0x20000")
```

```python
import re
REG = re.compile(r'\b([vsa])(\d+)\b|\b([vsa])\[(\d+):(\d+)\]|\b(vcc|exec|m0|scc)\b')
def regs(tok):
    out = set()
    for m in REG.finditer(tok):
        if m.group(1): out.add((m.group(1), int(m.group(2))))
        elif m.group(3):
            for i in range(int(m.group(4)), int(m.group(5)) + 1): out.add((m.group(3), i))
        else:
            n = m.group(6)
            out.add((n, 0))
    return out
TRANS = ('v_exp_f32', 'v_log_f32', 'v_rcp_f32', 'v_rsq_f32', 'v_sqrt_f32', 'v_sin_f32', 'v_cos_f32', 'v_rcp_iflag_f32')
def split_ops(rest):
    ops = []; d = 0; cur = ''
    for ch in rest:
        if ch == '[': d += 1
        if ch == ']': d -= 1
        if ch == ',' and d == 0: ops.append(cur.strip()); cur = ''
        else: cur += ch
    if cur.strip(): ops.append(cur.strip())
    return ops
class I:
    pass
def parse(line):
    s = line.split(';')[0].split('//')[0].strip()
    if not s or s.endswith(':') or s.startswith('.'): return None
    p = s.split(None, 1)
    i = I(); i.mn = p[0]; i.mn0 = re.sub(r'_(e32|e64|dpp|sdwa)$', '', p[0]); rest = p[1] if len(p) > 1 else ''
    i.text = s
    ops = split_ops(rest)
    mods = ''
    if ops:
        q = ops[-1].split(None, 1)
        ops[-1] = q[0]
        mods = q[1] if len(q) > 1 else ''
    i.ops = ops; i.mods = mods
    mn = i.mn0
    i.valu = mn.startswith('v_') and not mn.startswith('v_mfma')
    i.mfma = mn.startswith('v_mfma')
    i.trans = mn in TRANS
    i.ds = mn.startswith('ds_')
    i.vmem = mn.startswith('buffer_') or mn.startswith('global_') or mn.startswith('flat_')
    i.salu = mn.startswith('s_')
    i.dpp = ('dpp' in i.mn) or ('row_' in mods) or ('wave_' in mods) or ('quad_perm' in mods)
    i.perml = mn.startswith('v_permlane')
    i.w = set(); i.r = set()
    if mn == 's_nop': i.nstates = int(ops[0], 0) + 1
    else: i.nstates = 1
    R = [regs(o) for o in ops]
    if i.mfma:
        i.w = R[0]; i.A = R[1]; i.B = R[2]; i.C = R[3]; i.r = R[1] | R[2] | R[3]
        i.passes = 8 if '32x32' in mn else 4
        if '4x4' in mn: i.passes = 2
    elif i.valu:
        if mn.startswith('v_cmp'):
            i.w = R[0]; i.r = set().union(*R[1:])
            if mn.startswith('v_cmpx'): i.w |= {('exec', 0)}
        elif mn in ('v_readfirstlane_b32', 'v_readlane_b32'):
            i.w = R[0]; i.r = set().union(*R[1:])
        elif mn.startswith('v_permlane') and 'swap' in mn:
            i.w = R[0] | R[1]; i.r = R[0] | R[1]
        elif mn in ('v_add_co_u32', 'v_sub_co_u32', 'v_addc_co_u32', 'v_subb_co_u32', 'v_subrev_co_u32'):
            i.w = R[0] | R[1]; i.r = set().union(*R[2:])
        elif mn in ('v_div_scale_f32',):
            i.w = R[0] | R[1]; i.r = set().union(*R[2:])
        else:
            i.w = R[0]; i.r = set().union(*R[1:]) if len(R) > 1 else set()
            if mn in ('v_fmac_f32', 'v_dot2c_f32_bf16', 'v_writelane_b32', 'v_pk_fmac_f16') or i.dpp or 'sdwa' in i.mn: i.r |= R[0]
            if mn == 'v_cndmask_b32' and len(ops) == 3: i.r |= {('vcc', 0)}
    elif i.ds:
        if mn.startswith('ds_read') or mn.startswith('ds_bpermute') or mn.startswith('ds_permute') or mn.startswith('ds_swizzle') or 'rtn' in mn:
            i.w = R[0]; i.r = set().union(*R[1:])
        else:
            i.r = set().union(*R)
        if 'addtid' in mn: i.r |= {('m0', 0)}
    elif i.vmem:
        isld = ('_load' in mn)
        lds = (' lds' in (' ' + mods)) or ('_lds_' in mn)
        i.ldsdma = isld and lds
        if isld and not lds:
            i.w = R[0]; i.r = set().union(*R[1:])
        elif 'atomic' in mn and 'sc0' in mods:
            if mn.startswith('global'): i.w = R[0]; i.r = set().union(*R[1:])
            else: i.w = R[0]; i.r = set().union(*R)
        else:
            i.r = set().union(*R) if R else set()
        if i.ldsdma: i.r |= {('m0', 0)}
        i.store_wide = (('store' in mn) and ('x3' in mn or 'x4' in mn))
        if i.store_wide:
            i.sdata = R[1] if mn.startswith('global') else R[0]
    elif i.salu:
        nodst = ('s_cmp', 's_cbranch', 's_branch', 's_waitcnt', 's_nop', 's_barrier', 's_endpgm', 's_setprio', 's_sleep', 's_bitcmp', 's_setreg')
        if any(mn.startswith(x) for x in nodst):
            i.r = set().union(*R) if R else set()
        else:
            i.w = R[0] if R else set(); i.r = set().union(*R[1:]) if len(R) > 1 else set()
            if 'saveexec' in mn: i.w |= {('exec', 0)}
    return i
def isv(x): return x[0] in ('v', 'a')
def need(p, c):
    n = 0
    pw = p.w
    if p.valu:
        vw = {x for x in pw if isv(x)}
        sw = {x for x in pw if x[0] in ('s', 'vcc', 'exec')}
        if c.mfma and (vw & c.r): n = max(n, 2)
        if c.valu:
            if sw & c.r: n = max(n, 2)
            if c.mn0 in ('v_readlane_b32', 'v_writelane_b32') and (sw & c.r): n = max(n, 4)
            if c.mn0 in ('v_readlane_b32', 'v_readfirstlane_b32') and (vw & c.r): n = max(n, 1)
            if c.dpp and (vw & c.r): n = max(n, 2)
            if c.perml and (vw & c.r): n = max(n, 2)
            if p.trans and not c.trans and (vw & c.r): n = max(n, 1)
            if ('sdwa' in p.mn or 'op_sel' in p.mods) and not p.mn0.startswith('v_pk') and (vw & (c.r | c.w)): n = max(n, 1)
            if ('exec', 0) in pw and c.dpp: n = max(n, 5)
        if c.vmem and ({x for x in sw if x[0] == 's'} & c.r): n = max(n, 5)
        if c.salu and (sw & c.r): n = max(n, 2)
        if ('exec', 0) in pw and c.mfma: n = max(n, 4)
        if p.trans and (c.mfma or c.ds or c.vmem) and (vw & c.r): n = max(n, 2)
        if p.mn0.startswith('v_dot') and c.mn0 != p.mn0 and (vw & (c.r | c.w)): n = max(n, 3)
    if p.mfma:
        D = pw
        far = {2: 5, 4: 8, 8: 12}[p.passes]
        if c.mfma:
            if D & (c.A | c.B): n = max(n, far)
            if D & c.C:
                if not (c.C == D and c.passes == p.passes): n = max(n, {2: 4, 4: 6, 8: 10}[p.passes])
                elif p.passes == 2: n = max(n, 2)
            if (D & c.w) and not (D & c.C): n = max(n, far)
        elif c.valu or c.vmem or c.ds:
            if D & (c.r | c.w): n = max(n, far)
        if c.valu and (p.C & c.w): n = max(n, {2: 1, 4: 3, 8: 7}[p.passes])
    if p.vmem and getattr(p, 'store_wide', False):
        if c.valu and (p.sdata & c.w): n = max(n, 2)
        elif (p.sdata & c.w): n = max(n, 1)
    if p.salu and ('m0', 0) in pw:
        if (c.vmem and getattr(c, 'ldsdma', False)) or (c.ds and ('m0', 0) in c.r): n = max(n, 1)
    return n
def fix(lines, window=24):
    out = []; hist = []
    nins = 0
    for ln in lines:
        i = parse(ln)
        if i is None:
            out.append(ln); continue
        req = 0; dist = 0
        for p in reversed(hist):
            r = need(p, i)
            if r > dist: req = max(req, r - dist)
            dist += p.nstates
            if dist > 20: break
        while req > 0:
            k = min(req, 16)
            nl = f"s_nop {k-1}"
            out.append(nl); hist.append(parse(nl)); req -= k; nins += 1
        out.append(ln); hist.append(i)
        if len(hist) > window: hist.pop(0)
    return out, nins
```

```python
import sys
sys.path.insert(0, "dev")
from asmlib import *

WS_KV = 0
WS_Z = 32768
WS_G = 0x9000
WS_PQ = 0x10000
WS_YT = WS_PQ + 0x200000
WS_SIZE = WS_YT + 0x200000
K_U, K_ARE, K_AIM, K_BRE, K_BIM, K_CRE, K_CIM, K_LDT, K_DSK, K_BX, K_WQKV, K_WO, K_GW, K_OUT, K_DBG, K_WS = [8 * i for i in range(16)]
LOG2E = 0x3fb8aa3b
EPS = 0x358637bd

def phi_inplace(a, regs, tmp, s_log2e, s_eps):
    n = len(regs); T = len(tmp)
    for g in range(0, n, T):
        grp = regs[g:g + T]
        for j, r in enumerate(grp): a(f"v_mul_f32 v{tmp[j]}, s{s_log2e}, v{r}")
        for j, r in enumerate(grp): a(f"v_min_f32 v{tmp[j]}, 0, v{tmp[j]}")
        for j, r in enumerate(grp): a(f"v_exp_f32 v{tmp[j]}, v{tmp[j]}")
        for j, r in enumerate(grp): a(f"v_max_f32 v{r}, 0, v{r}")
        for j, r in enumerate(grp): a(f"v_add_f32 v{tmp[j]}, s{s_eps}, v{tmp[j]}")
        for j, r in enumerate(grp): a(f"v_add_f32 v{r}, v{r}, v{tmp[j]}")

PROF = False
WS_PROF = 0x800000
NST = 12
def stamp(a, i):
    if PROF:
        a(f"s_memtime s[{64+2*i}:{65+2*i}]")
def stamp_rt(a, i):
    if PROF:
        a(f"s_memrealtime s[{64+2*i}:{65+2*i}]")
def stamp_flush(a, ws_srd, s_wave, nwaves):
    if PROF:
        a("s_waitcnt lgkmcnt(0)")
        a(f"s_mul_i32 s90, s2, {nwaves}\ns_add_u32 s90, s90, s{s_wave}\ns_lshl_b32 s90, s90, 6\ns_add_u32 s90, s90, {WS_PROF}")
        a("s_mov_b64 exec, 1")
        a("v_mov_b32 v250, 0")
        for i in range(NST):
            a(f"v_mov_b32 v251, s{64+2*i}")
            a(f"buffer_store_dword v251, v250, s[{ws_srd}:{ws_srd+3}], s90 offen offset:{4*i}")
            a("s_nop 1")
        a("s_waitcnt vmcnt(0)")
def gen_zero(a, name):
    kernel_begin(a, name)
    a("s_cmp_ge_u32 s2, 9\ns_cbranch_scc1 LZ_end")
    srd(a, 8, K_WS, 0); a("s_waitcnt lgkmcnt(0)"); srd_fin(a, 8, 36864)
    a("s_lshl_b32 s3, s2, 12\nv_lshlrev_b32 v1, 4, v0\nv_add_u32 v1, s3, v1")
    a("v_mov_b32 v4, 0\nv_mov_b32 v5, 0\nv_mov_b32 v6, 0\nv_mov_b32 v7, 0")
    a("buffer_store_dwordx4 v[4:7], v1, s[8:11], 0 offen")
    a("LZ_end:\ns_endpgm")

XS = [0, 16384, 32768]
WSL = [49152, 49152 + 24576, 49152 + 49152]
GEMM_LDS = 49152 + 3 * 24576
def gen_gemm_body(a, P, s_rt, s_cb, end_label):
    L = lambda x: f"{P}_{x}"
    a(f"v_and_b32 v1, 63, v0")
    a(f"s_cmp_ge_u32 s24, 4\ns_cbranch_scc1 {L('loader')}")
    a("s_and_b32 s27, s24, 1\ns_lshr_b32 s28, s24, 1")
    VX = [2, 3, 4, 5]; VW = 6; VW2 = 7
    a("v_and_b32 v8, 31, v1\nv_lshrrev_b32 v9, 5, v1")
    a("v_lshrrev_b32 v10, 1, v8\nv_and_b32 v10, 7, v10")
    a("v_lshlrev_b32 v11, 7, v8\ns_lshl_b32 s29, s27, 13\nv_add_u32 v11, s29, v11")
    for ks in range(4):
        a(f"v_add_u32 v12, {2*ks}, v9\nv_xor_b32 v12, v12, v10\nv_lshlrev_b32 v12, 4, v12\nv_add_u32 v{VX[ks]}, v11, v12")
    a("v_lshrrev_b32 v8, 5, v1")
    a("v_bfe_u32 v9, v1, 2, 2")
    a("v_lshlrev_b32 v10, 3, v8\nv_add_u32 v10, v10, v9\nv_lshlrev_b32 v10, 7, v10")
    a("v_bfe_u32 v11, v1, 4, 1\nv_lshlrev_b32 v11, 1, v11")
    a("v_bfe_u32 v12, v1, 1, 1\nv_add_u32 v11, v11, v12")
    a("s_lshl_b32 s29, s28, 2\nv_add_u32 v11, s29, v11")
    a("v_lshrrev_b32 v12, 1, v9\nv_lshlrev_b32 v12, 2, v12\nv_xor_b32 v11, v11, v12\nv_lshlrev_b32 v11, 4, v11")
    a("v_and_b32 v12, 1, v1\nv_lshlrev_b32 v12, 3, v12")
    a(f"v_add_u32 v10, v10, v11\nv_add_u32 v10, v10, v12\nv_add_u32 v{VW}, {WSL[0]}, v10\nv_add_u32 v{VW2}, {WSL[2]}, v10")
    ACC = 32
    QT = [ACC, ACC + 16]; KK = [ACC + 32, ACC + 48]; VV = [ACC + 64, ACC + 80]
    FR = 128
    def fx(s_, i): return FR + 20 * s_ + 4 * i
    def fw(s_, g): return FR + 20 * s_ + 8 + 4 * g
    def reads(sig):
        c, ks = divmod(sig, 4); st = sig & 1; sl = c % 3
        lst = []
        wa = VW if sl < 2 else VW2
        wo_ = (24576 if sl == 1 else 0) + ks * 2048
        lst.append((f"ds_read_b128 v[{fx(st,0)}:{fx(st,0)+3}], v{VX[ks]} offset:{XS[sl]}", (sig, 'x0')))
        for t in range(2): lst.append((f"ds_read_b64_tr_b16 v[{fw(st,0)+2*t}:{fw(st,0)+2*t+1}], v{wa} offset:{wo_ + t*512}", (sig, 'w0')))
        for t in range(2): lst.append((f"ds_read_b64_tr_b16 v[{fw(st,1)+2*t}:{fw(st,1)+2*t+1}], v{wa} offset:{wo_ + 8192 + t*512}", (sig, 'w1')))
        for t in range(2): lst.append((f"ds_read_b64_tr_b16 v[{fw(st,2)+2*t}:{fw(st,2)+2*t+1}], v{wa} offset:{wo_ + 16384 + t*512}", (sig, 'w2')))
        lst.append((f"ds_read_b128 v[{fx(st,1)}:{fx(st,1)+3}], v{VX[ks]} offset:{XS[sl] + 4096}", (sig, 'x1')))
        return lst
    def mf(D, A_, B_, first):
        c = "0" if first else f"v[{D}:{D+15}]"
        return f"v_mfma_f32_32x32x16_bf16 v[{D}:{D+15}], v[{A_}:{A_+3}], v[{B_}:{B_+3}], {c}"
    a.lds_reset()
    stamp(a, 1)
    a("s_barrier")
    stamp(a, 2)
    for ins, tag in reads(0): a.lds(ins, tag)
    for sig in range(32):
        c, ks = divmod(sig, 4); st = sig & 1; first = (sig == 0)
        ms = [(mf(QT[0], fw(st,0), fx(st,0), first), [(sig,'x0'), (sig,'w0')]),
              (mf(KK[0], fx(st,0), fw(st,1), first), [(sig,'w1')]),
              (mf(VV[0], fx(st,0), fw(st,2), first), [(sig,'w2')]),
              (mf(QT[1], fw(st,0), fx(st,1), first), [(sig,'x1')]),
              (mf(KK[1], fx(st,1), fw(st,1), first), []),
              (mf(VV[1], fx(st,1), fw(st,2), first), [])]
        nxt = reads(sig + 1) if sig < 31 else []
        newchunk = (ks == 3 and c < 7)
        for mi, (m, deps) in enumerate(ms):
            if deps: a.lds_wait(deps)
            a(m)
            if mi == 0 and newchunk:
                a.lds_wait(None)
                a("s_barrier")
            take = {0: 3, 1: 2, 2: 2, 3: 1}.get(mi, 0)
            for _ in range(take):
                if nxt:
                    ins, tag = nxt.pop(0); a.lds(ins, tag)
        assert not nxt
        if sig == 15: stamp(a, 3)
    stamp(a, 4)
    a(f"s_mov_b32 s30, {LOG2E}\ns_mov_b32 s31, {EPS}")
    TMP = list(range(8, 16))
    kregs = list(range(KK[0], KK[0] + 32))
    phi_inplace(a, kregs, TMP, 30, 31)
    ZS = 16
    a(f"v_add_f32 v{ZS}, v{kregs[0]}, v{kregs[1]}\nv_add_f32 v{ZS+1}, v{kregs[2]}, v{kregs[3]}")
    for j in range(4, 32, 2):
        a(f"v_add_f32 v{ZS}, v{ZS}, v{kregs[j]}\nv_add_f32 v{ZS+1}, v{ZS+1}, v{kregs[j+1]}")
    a(f"v_add_f32 v{ZS}, v{ZS}, v{ZS+1}")
    a(f"v_mov_b32 v{ZS+1}, v{ZS}")
    a(f"v_permlane32_swap_b32 v{ZS}, v{ZS+1}")
    a(f"v_add_f32 v{ZS}, v{ZS}, v{ZS+1}")
    PK = FR; PV = FR + 16
    for i in range(2):
        for j in range(8):
            a(f"v_cvt_pk_bf16_f32 v{PK + 8*i + j}, v{KK[i] + 2*j}, v{KK[i] + 2*j + 1}")
            a(f"v_cvt_pk_bf16_f32 v{PV + 8*i + j}, v{VV[i] + 2*j}, v{VV[i] + 2*j + 1}")
    KVD = KK[0]
    for i in range(2):
        for h in range(2):
            first = (i == 0 and h == 0)
            cc = "0" if first else f"v[{KVD}:{KVD+15}]"
            a(f"v_mfma_f32_32x32x16_bf16 v[{KVD}:{KVD+15}], v[{PK+8*i+4*h}:{PK+8*i+4*h+3}], v[{PV+8*i+4*h}:{PV+8*i+4*h+3}], {cc}")
    qregs = list(range(QT[0], QT[0] + 32))
    phi_inplace(a, qregs, TMP, 30, 31)
    stamp(a, 5)
    a("v_and_b32 v8, 16, v1\nv_cmp_eq_u32 vcc, 0, v8")
    SEL = VV[0]
    for r in range(8):
        a(f"v_cndmask_b32 v{SEL + r}, v{KVD + 8 + r}, v{KVD + r}, vcc")
    a(f"s_lshl_b32 s32, s{s_cb}, 1\ns_add_u32 s32, s32, s28")
    a(f"s_lshl_b32 s33, s32, 11")
    a("v_lshlrev_b32 v9, 2, v1")
    for r in range(8):
        a(f"buffer_atomic_add_f32 v{SEL + r}, v9, s[16:19], s33 offen offset:{256*r}")
    a(f"s_lshl_b32 s33, s32, 7\ns_add_u32 s33, s33, {WS_Z}")
    a("s_mov_b64 exec, 0xffffffff")
    a(f"buffer_atomic_add_f32 v{ZS}, v9, s[16:19], s33 offen")
    a("s_mov_b64 exec, -1")
    PQR = FR
    for i in range(2):
        for j in range(8):
            a(f"v_cvt_pk_bf16_f32 v{PQR + 8*i + j}, v{QT[i] + 2*j}, v{QT[i] + 2*j + 1}")
    a(f"s_lshl_b32 s33, s{s_rt}, 2\ns_lshl_b32 s34, s27, 1\ns_add_u32 s33, s33, s34\ns_lshl_b32 s33, s33, 15")
    a(f"s_lshl_b32 s34, s32, 11\ns_add_u32 s33, s33, s34\ns_add_u32 s33, s33, {WS_PQ}")
    a("v_lshlrev_b32 v9, 4, v1")
    for i in range(2):
        for h in range(2):
            if i == 1 and h == 0: a("s_add_u32 s33, s33, 32768")
            a(f"buffer_store_dwordx4 v[{PQR+8*i+4*h}:{PQR+8*i+4*h+3}], v9, s[16:19], s33 offen offset:{1024*h}")
    stamp(a, 6)
    if PROF: a("s_waitcnt vmcnt(0)")
    stamp(a, 7)
    a(f"s_branch {end_label}")
    a(f"{L('loader')}:")
    a("s_nop 4")
    a("s_sub_u32 s27, s24, 4")
    a("v_lshrrev_b32 v8, 3, v1\nv_and_b32 v9, 7, v1\nv_lshrrev_b32 v10, 4, v1")
    a("v_xor_b32 v11, v9, v10\nv_lshlrev_b32 v11, 4, v11\nv_lshlrev_b32 v12, 10, v8\nv_add_u32 v2, v11, v12")
    a("v_add_u32 v10, 4, v10\nv_xor_b32 v11, v9, v10\nv_lshlrev_b32 v11, 4, v11\nv_add_u32 v3, v11, v12")
    a("v_bfe_u32 v10, v1, 4, 1\nv_lshlrev_b32 v10, 2, v10\nv_xor_b32 v11, v9, v10\nv_lshlrev_b32 v11, 4, v11")
    a("v_mul_u32_u24 v12, 3072, v8\nv_add_u32 v4, v11, v12")
    a(f"s_lshl_b32 s28, s{s_rt}, 17\ns_lshl_b32 s29, s27, 15\ns_add_u32 s28, s28, s29")
    a(f"s_mul_i32 s29, s27, {16*3072}\ns_lshl_b32 s30, s{s_cb}, 7\ns_add_u32 s29, s29, s30")
    a("s_lshl_b32 s31, s27, 12")
    a("s_lshl_b32 s32, s27, 11")
    GW = 32
    a(f"s_cmp_lg_u32 s27, 0\ns_cbranch_scc1 {L('nogate0')}")
    a("v_and_b32 v8, 3, v1\nv_lshlrev_b32 v9, 5, v8")
    for c in range(8):
        a(f"buffer_load_dwordx4 v[{GW+8*c}:{GW+8*c+3}], v9, s[20:23], 0 offen offset:{128*c}")
        a(f"buffer_load_dwordx4 v[{GW+8*c+4}:{GW+8*c+7}], v9, s[20:23], 0 offen offset:{128*c+16}")
    a(f"v_lshrrev_b32 v10, 2, v1\ns_lshl_b32 s33, s{s_cb}, 4\nv_add_u32 v10, s33, v10")
    a("v_lshrrev_b32 v11, 1, v10\nv_and_b32 v11, 7, v11\nv_lshlrev_b32 v12, 1, v8")
    a("v_xor_b32 v13, v12, v11\nv_lshlrev_b32 v13, 4, v13\nv_lshlrev_b32 v14, 7, v10\nv_add_u32 v5, v13, v14")
    a("v_add_u32 v12, 1, v12\nv_xor_b32 v13, v12, v11\nv_lshlrev_b32 v13, 4, v13\nv_add_u32 v6, v13, v14")
    a("v_mov_b32 v7, 0")
    a(f"{L('nogate0')}:")
    a("s_nop 1")
    def issue(c):
        sl = c % 3
        for ii in range(4):
            a(f"s_add_u32 s33, s28, {ii*8192 + 128*c}")
            a(f"s_add_u32 m0, s31, {XS[sl] + ii*1024}")
            a("s_nop 0")
            a(f"buffer_load_dwordx4 v{2 + (ii & 1)}, s[8:11], s33 offen lds")
        for sg in range(3):
            for jj in range(2):
                a(f"s_add_u32 s33, s29, {(64*c + 8*jj)*3072 + 1024*sg}")
                a(f"s_add_u32 m0, s32, {WSL[sl] + sg*8192 + jj*1024}")
                a("s_nop 0")
                a(f"buffer_load_dwordx4 v4, s[12:15], s33 offen lds")
    def gate(c):
        sl = c % 3
        lab = L(f'ng{c}')
        a(f"s_cmp_lg_u32 s27, 0\ns_cbranch_scc1 {lab}")
        a(f"ds_read_b128 v[16:19], v5 offset:{XS[sl]}\nds_read_b128 v[20:23], v6 offset:{XS[sl]}\ns_waitcnt lgkmcnt(0)")
        for j in range(8):
            a(f"v_dot2c_f32_bf16 v7, v{16+j}, v{GW + 8*c + j}")
        a(f"{lab}:")
    issue(0); issue(1); issue(2)
    stamp(a, 1)
    for c in range(8):
        a(f"s_waitcnt vmcnt({20 if c == 0 else (10 if c < 7 else 0)})")
        if c < 6: stamp(a, 2 + c)
        a("s_barrier")
        if 1 <= c <= 5: issue(c + 2)
        gate(c)
    a(f"s_cmp_lg_u32 s27, 0\ns_cbranch_scc1 {end_label}")
    a("v_add_f32_dpp v7, v7, v7 quad_perm:[1,0,3,2] row_mask:0xf bank_mask:0xf")
    a("v_add_f32_dpp v7, v7, v7 quad_perm:[2,3,0,1] row_mask:0xf bank_mask:0xf")
    a(f"s_mov_b32 s30, 0xbfb8aa3b\nv_mul_f32 v7, s30, v7\nv_exp_f32 v7, v7\nv_add_f32 v7, 1.0, v7\nv_rcp_f32 v7, v7")
    a(f"s_lshl_b32 s33, s{s_rt}, 9\ns_lshl_b32 s34, s{s_cb}, 6\ns_add_u32 s33, s33, s34\ns_add_u32 s33, s33, {WS_G}")
    a("v_and_b32 v8, 3, v1\nv_cmp_eq_u32 vcc, 0, v8\nv_and_b32 v9, 60, v1")
    a("s_and_saveexec_b64 s[36:37], vcc")
    a(f"s_cbranch_execz {end_label}")
    a("buffer_store_dword v7, v9, s[16:19], s33 offen")
    a(f"s_branch {end_label}")

def gen_gemm(a, name):
    kernel_begin(a, name)
    a(f"s_cmp_ge_u32 s2, 128\ns_cbranch_scc1 LG_end")
    srd(a, 8, K_U, 0); srd(a, 12, K_WQKV, 0); srd(a, 16, K_WS, 0); srd(a, 20, K_GW, 0)
    a("v_lshrrev_b32 v2, 6, v0\ns_nop 0\nv_readfirstlane_b32 s24, v2")
    a("s_and_b32 s3, s2, 7\ns_lshr_b32 s4, s2, 3")
    a("s_lshr_b32 s25, s3, 1\ns_lshl_b32 s25, s25, 2\ns_lshr_b32 s5, s4, 2\ns_add_u32 s25, s25, s5")
    a("s_and_b32 s26, s3, 1\ns_lshl_b32 s26, s26, 2\ns_and_b32 s5, s4, 3\ns_add_u32 s26, s26, s5")
    a("s_waitcnt lgkmcnt(0)")
    srd_fin(a, 8, 2048 * 1024); srd_fin(a, 12, 512 * 3072); srd_fin(a, 16, WS_SIZE if not PROF else 0x1000000); srd_fin(a, 20, 1024)
    stamp(a, 0); stamp_rt(a, 10)
    gen_gemm_body(a, "LG", 25, 26, "LG_fin")
    a("LG_fin:\ns_mov_b64 exec, -1")
    stamp_rt(a, 11)
    stamp_flush(a, 16, 24, 8)
    a("LG_end:\ns_endpgm")


E_RS = 544
E_CH = 2 * 16 * E_RS
C_E = 0
C_KF = 4 * E_CH
KF_CH = 4608
C_TT = C_KF + 4 * KF_CH
TT_CH = 2048
C_U = C_TT + 4 * TT_CH
U_CP = 4160
U_CH = 4 * U_CP
CONV_LDS = C_U + 4 * U_CH
INV2PI = 0x3e22f983
def cmul(a, d, x, y, t):
    a(f"v_pk_mul_f32 v[{t}:{t+1}], v[{x}:{x+1}], v[{y}:{y+1}] op_sel:[0,0] op_sel_hi:[0,1]")
    a(f"v_pk_fma_f32 v[{d}:{d+1}], v[{x}:{x+1}], v[{y}:{y+1}], v[{t}:{t+1}] op_sel:[1,1,0] op_sel_hi:[1,0,1] neg_lo:[1,0,0]")

def gen_conv_body(a, P, s_cw, end_label):
    L = lambda x: f"{P}_{x}"
    a("v_and_b32 v1, 63, v0")
    a(f"s_cmp_ge_u32 s24, 4\ns_cbranch_scc1 {L('helper')}")
    a(f"s_lshl_b32 s27, s{s_cw}, 2\ns_add_u32 s27, s27, s24")
    for i, k in enumerate((K_ARE, K_AIM, K_BRE, K_BIM, K_CRE, K_CIM)):
        a(f"s_load_dwordx2 s[{28+2*i}:{29+2*i}], s[0:1], {k}")
    a(f"s_load_dwordx2 s[40:41], s[0:1], {K_LDT}\ns_load_dwordx2 s[42:43], s[0:1], {K_DSK}")
    a("s_lshl_b32 s44, s27, 8\nv_lshlrev_b32 v2, 2, v1\nv_add_u32 v2, s44, v2")
    a("s_waitcnt lgkmcnt(0)")
    for i in range(6):
        a(f"global_load_dword v{4+i}, v2, s[{28+2*i}:{29+2*i}]")
    a("s_lshr_b32 s45, s27, 1\ns_lshl_b32 s45, s45, 2")
    a("s_add_u32 s40, s40, s45\ns_addc_u32 s41, s41, 0\ns_add_u32 s42, s42, s45\ns_addc_u32 s43, s43, 0")
    a("s_load_dword s46, s[40:41], 0\ns_load_dword s47, s[42:43], 0")
    VEW = 12
    VER = 13
    a(f"s_mul_i32 s48, s24, {E_CH}")
    a(f"v_lshlrev_b32 v{VEW}, 3, v1\nv_add_u32 v{VEW}, s48, v{VEW}")
    a(f"v_and_b32 v14, 15, v1\nv_lshrrev_b32 v15, 4, v1")
    a(f"v_mul_u32_u24 v{VER}, {E_RS}, v14\nv_lshlrev_b32 v16, 4, v15\nv_add_u32 v{VER}, v{VER}, v16\nv_add_u32 v{VER}, s48, v{VER}")
    a(f"s_mul_i32 s49, s24, {KF_CH}\ns_add_u32 s49, s49, {C_KF}")
    a("v_mov_b32 v20, 0\nv_mov_b32 v21, 0\nv_mov_b32 v22, 0\nv_mov_b32 v23, 0")
    a("v_lshlrev_b32 v16, 4, v1\nv_add_u32 v16, s49, v16")
    a("s_mov_b32 exec_lo, 0x3fffffff\ns_mov_b32 exec_hi, 0")
    a("ds_write_b128 v16, v[20:23]")
    a("s_mov_b64 exec, -1")
    a("s_waitcnt lgkmcnt(0)")
    a("s_and_b32 s45, s27, 1\ns_lshl_b32 s45, s45, 4")
    a("s_lshr_b32 s46, s46, s45\ns_lshl_b32 s46, s46, 16\ns_lshr_b32 s47, s47, s45\ns_lshl_b32 s47, s47, 16")
    a(f"s_mov_b32 s50, {LOG2E}\ns_mov_b32 s51, 0x32a57060")
    a("v_mov_b32 v16, s46\nv_mul_f32 v17, s50, v16\nv_fma_f32 v18, v16, s50, -v17\nv_fma_f32 v18, v16, s51, v18")
    a("v_exp_f32 v17, v17\nv_mul_f32 v18, 0x3f317218, v18\nv_fma_f32 v17, v17, v18, v17")
    a("v_cvt_pk_bf16_f32 v17, v17, v17\nv_and_b32 v17, 0xffff0000, v17")
    DT = 17
    a("s_waitcnt vmcnt(0)")
    stamp(a, 1)
    MB = [32, 80]
    o_ab, o_c, o_w1, o_w8, o_w128, o_L, o_P, o_W, o_t, o_u = 0, 2, 4, 6, 8, 10, 12, 28, 30, 32
    for m in range(2):
        B = MB[m]; U = B + o_u
        for i in range(6):
            if m == 0: a(f"v_lshlrev_b32 v{U+i}, 16, v{4+i}")
            else: a(f"v_and_b32 v{U+i}, 0xffff0000, v{4+i}")
        a(f"v_mul_f32 v{U+0}, v{DT}, v{U+0}\nv_mul_f32 v{U+1}, v{DT}, v{U+1}\nv_mul_f32 v{U+2}, v{DT}, v{U+2}\nv_mul_f32 v{U+3}, v{DT}, v{U+3}")
        a(f"v_mul_f32 v{B+o_ab}, s50, v{U+0}\nv_mul_f32 v{B+o_ab+1}, {INV2PI}, v{U+1}")
        cmul(a, B + o_c, U + 4, U + 2, B + o_t)
    for m in range(2):
        B = MB[m]; U = B + o_u
        for (o, e) in ((o_w1, 1.0), (o_w8, 8.0), (o_w128, 128.0)):
            lit = {1.0: "1.0", 8.0: "0x41000000", 128.0: "0x43000000"}[e]
            a(f"v_mul_f32 v{U}, {lit}, v{B+o_ab}\nv_mul_f32 v{U+1}, {lit}, v{B+o_ab+1}")
            a(f"v_fract_f32 v{U+1}, v{U+1}")
            a(f"v_exp_f32 v{U}, v{U}\nv_cos_f32 v{U+2}, v{U+1}\nv_sin_f32 v{U+3}, v{U+1}")
            a(f"v_mul_f32 v{B+o}, v{U}, v{U+2}\nv_mul_f32 v{B+o+1}, v{U}, v{U+3}")
    CV = 24
    cvi = [0]
    def put(row, srcs, neg):
        c = CV + 2 * (cvi[0] & 1); cvi[0] += 1
        for m in range(2):
            if srcs[m] is None: a(f"v_mov_b32 v{c+m}, 0x3f80")
            else: a(f"v_cvt_pk_bf16_f32 v{c+m}, v{srcs[m]}, {'-' if neg else ''}v{srcs[m]+1}")
        a(f"ds_write_b64 v{VEW}, v[{c}:{c+1}] offset:{row*E_RS}")
    both = lambda o: [MB[0] + o, MB[1] + o]
    put(0, both(o_c), True)
    cur = o_c
    for j in range(1, 16):
        nx = o_L if cur != o_L else o_t + 2 + 0
        nx = o_L if (j & 1) else o_u + 8
        for m in range(2): cmul(a, MB[m] + nx, MB[m] + cur, MB[m] + o_w8, MB[m] + o_t)
        put(j, both(nx), True); cur = nx
    def Pn(b): return o_P + 2 * (b - 1)
    for m in range(2): a(f"v_mov_b32 v{MB[m]+Pn(1)}, v{MB[m]+o_w1}\nv_mov_b32 v{MB[m]+Pn(1)+1}, v{MB[m]+o_w1+1}")
    put(16, [None, None], False)
    put(17, both(Pn(1)), False)
    for b in range(2, 8):
        for m in range(2): cmul(a, MB[m] + Pn(b), MB[m] + Pn(b - 1), MB[m] + o_w1, MB[m] + o_t)
        put(16 + b, both(Pn(b)), False)
    put(16 + 8, both(o_w128), False)
    for b in range(1, 8):
        for m in range(2): cmul(a, MB[m] + o_u + 2 * (b & 1), MB[m] + o_w128, MB[m] + Pn(b), MB[m] + o_t)
        put(16 + 8 + b, both(o_u + 2 * (b & 1)), False)
    LF = 128; HF = 160; DD = 192
    stamp(a, 2)
    a("s_waitcnt lgkmcnt(0)")
    for ks in range(8): a(f"ds_read_b128 v[{LF+4*ks}:{LF+4*ks+3}], v{VER} offset:{64*ks}")
    def tile_mfma(D):
        for ks in range(8): a(f"ds_read_b128 v[{HF+4*ks}:{HF+4*ks+3}], v{VER} offset:{16*E_RS + 64*ks}")
        a("s_waitcnt lgkmcnt(0)")
        for ks in range(8):
            c = "0" if ks == 0 else f"v[{D}:{D+3}]"
            a(f"v_mfma_f32_16x16x32_bf16 v[{D}:{D+3}], v[{HF+4*ks}:{HF+4*ks+3}], v[{LF+4*ks}:{LF+4*ks+3}], {c}")
    tile_mfma(DD)
    Wc = {1: o_w128}
    def nextW(i):
        d = o_W if (i & 1) == 0 else o_u + 8
        for m in range(2): cmul(a, MB[m] + d, MB[m] + Wc[i - 1], MB[m] + o_w128, MB[m] + o_t)
        Wc[i] = d
    row = 0
    for i in (2, 3):
        nextW(i); put(16 + row, both(Wc[i]), False); row += 1
        for b in (2, 4, 6):
            for m in range(2): cmul(a, MB[m] + o_u + 2 * (row & 1), MB[m] + Wc[i], MB[m] + Pn(b), MB[m] + o_t)
            put(16 + row, both(o_u + 2 * (row & 1)), False); row += 1
    for i in (4, 5, 6, 7):
        nextW(i); put(16 + row, both(Wc[i]), False); row += 1
        for m in range(2): cmul(a, MB[m] + o_u + 2 * (row & 1), MB[m] + Wc[i], MB[m] + Pn(4), MB[m] + o_t)
        put(16 + row, both(o_u + 2 * (row & 1)), False); row += 1
    assert row == 16
    a("v_cmp_eq_u32 vcc, 0, v1\nv_mov_b32 v16, s47\nv_cndmask_b32 v16, 0, v16, vcc")
    a(f"v_add_f32 v{DD}, v{DD}, v16")
    a(f"v_cvt_pk_bf16_f32 v20, v{DD}, v{DD+1}\nv_cvt_pk_bf16_f32 v21, v{DD+2}, v{DD+3}")
    a("v_lshrrev_b32 v16, 1, v15\nv_lshlrev_b32 v16, 8, v16")
    a("v_and_b32 v18, 1, v15\nv_lshlrev_b32 v18, 3, v18\nv_add_u32 v16, v16, v18")
    a("v_lshlrev_b32 v18, 4, v14\nv_add_u32 v16, v16, v18")
    a(f"s_add_u32 s52, s49, 480\nv_add_u32 v16, s52, v16")
    a("ds_write_b64 v16, v[20:21]")
    a("s_waitcnt lgkmcnt(0)")
    tile_mfma(DD + 4)
    for i in range(8, 17):
        nextW(i); put(16 + i - 8, both(Wc[i]), False)
    a(f"s_mul_i32 s53, s24, {TT_CH}\ns_add_u32 s53, s53, {C_TT}")
    a("v_lshlrev_b32 v16, 6, v15\nv_lshlrev_b32 v18, 2, v14\nv_add_u32 v16, v16, v18")
    a("v_add_u32 v18, 2, v16")
    a("v_lshlrev_b32 v19, 6, v15\nv_lshlrev_b32 v20, 1, v14\nv_add_u32 v19, v19, v20")
    a("v_add_u32 v20, 32, v19")
    a("v_cmp_gt_u32 vcc, 2, v15")
    a("v_cndmask_b32 v16, v19, v16, vcc\nv_cndmask_b32 v18, v20, v18, vcc")
    a("v_lshlrev_b32 v16, 2, v16\nv_lshlrev_b32 v18, 2, v18\nv_add_u32 v16, s53, v16\nv_add_u32 v18, s53, v18")
    a(f"ds_write_b64 v16, v[{DD+4}:{DD+5}]\nds_write_b64 v18, v[{DD+6}:{DD+7}]")
    a("s_waitcnt lgkmcnt(0)")
    tile_mfma(DD + 8)
    a("v_lshlrev_b32 v16, 6, v15\nv_add_u32 v16, v16, v14\nv_lshlrev_b32 v16, 2, v16\nv_add_u32 v16, s53, v16")
    for r in range(4): a(f"ds_write_b32 v16, v{DD+8+r} offset:{1024 + 64*r}")
    a("s_waitcnt lgkmcnt(0)")
    a("v_lshlrev_b32 v16, 4, v1\nv_add_u32 v18, s53, v16\nv_add_u32 v19, s52, v16")
    a("s_mov_b64 exec, 0xffffffff")
    a("ds_read_b128 v[32:35], v18\nds_read_b32 v36, v18 offset:16")
    a("s_mov_b64 exec, -1")
    a("v_lshlrev_b32 v20, 3, v1\nv_add_u32 v20, s53, v20")
    a("ds_read_b64 v[40:41], v20 offset:512\nds_read_b32 v42, v20 offset:520")
    a("v_lshlrev_b32 v21, 2, v1\nv_add_u32 v21, s53, v21")
    a("ds_read_b32 v44, v21 offset:1024\nds_read_b32 v45, v21 offset:1028\nds_read_b32 v46, v21 offset:1280\nds_read_b32 v47, v21 offset:1284")
    a("s_waitcnt lgkmcnt(0)")
    a("v_cvt_pk_bf16_f32 v48, v32, v32\nv_cvt_pk_bf16_f32 v49, v33, v34\nv_cvt_pk_bf16_f32 v50, v34, v34\nv_cvt_pk_bf16_f32 v51, v35, v36")
    a("s_mov_b64 exec, 0xffffffff")
    a("ds_write_b128 v19, v[48:51] offset:512")
    a("s_mov_b64 exec, -1")
    a("v_cvt_pk_bf16_f32 v52, v40, v40\nv_cvt_pk_bf16_f32 v53, v40, v41\nv_cvt_pk_bf16_f32 v54, v41, v41\nv_cvt_pk_bf16_f32 v55, v42, v42")
    a("ds_write_b128 v19, v[52:55] offset:1024")
    a("v_and_b32 v22, 1, v1\nv_cmp_eq_u32 vcc, 0, v22")
    for p in range(2):
        t0, t1 = 44 + 2 * p, 45 + 2 * p
        a(f"v_cndmask_b32 v23, v{t1}, v{t0}, vcc")
        o = 56 + 4 * p
        a(f"v_cvt_pk_bf16_f32 v{o}, v{t0}, v{t0}\nv_mov_b32 v{o+1}, v{o}\nv_cvt_pk_bf16_f32 v{o+2}, v23, v{t1}\nv_cvt_pk_bf16_f32 v{o+3}, v{t1}, v{t1}")
        a(f"ds_write_b128 v19, v[{o}:{o+3}] offset:{2048 + 1024*p}")
    stamp(a, 3)
    ACC = 64; AF = 96; BF = 128
    VA = 2; VB = 3
    a(f"s_mul_i32 s54, s24, {U_CH}\ns_add_u32 s54, s54, {C_U + 24}")
    a(f"v_and_b32 v16, 3, v14\nv_sub_u32 v16, 3, v16\nv_mul_u32_u24 v16, {U_CP}, v16")
    a("v_lshlrev_b32 v18, 4, v15\nv_add_u32 v16, v16, v18\nv_lshrrev_b32 v18, 2, v14\nv_lshlrev_b32 v18, 3, v18\nv_sub_u32 v16, v16, v18")
    a(f"v_add_u32 v{VA}, s54, v16")
    a(f"v_lshlrev_b32 v16, 5, v14\nv_lshlrev_b32 v18, 4, v15\nv_add_u32 v16, v16, v18\nv_add_u32 v{VB}, s49, v16")
    for r in range(32): a(f"v_mov_b32 v{ACC+r}, 0")
    a("s_waitcnt lgkmcnt(0)")
    stamp(a, 4)
    a("s_barrier")
    stamp(a, 5)
    steps = [(0, b) for b in range(8)] + [(1, b) for b in range(8)]
    def loads(si):
        ph, b = steps[si]; st = si & 1
        lst = []
        alist = range(0, 4) if ph == 0 else range(4, 8)
        mlist = range(0, 8) if ph == 0 else range(0, 4)
        A_ = [(f"ds_read_b64 v[{AF+16*st+4*(x-alist[0])+2*t}:{AF+16*st+4*(x-alist[0])+2*t+1}], v{VA} offset:{4032 - 64*(8*x+b) + 8*t}", (si, 'a', x)) for x in alist for t in range(2)]
        B_ = [(f"ds_read_b128 v[{BF+32*st+4*m}:{BF+32*st+4*m+3}], v{VB} offset:{448 + 64*(8*m - b)}", (si, 'b', m)) for m in mlist]
        na = len(list(alist))
        for i in range(max(na, len(B_))):
            if i < na: lst += A_[2*i:2*i+2]
            if i < len(B_): lst.append(B_[i])
        return lst
    a.lds_reset()
    for ins, tag in loads(0): a.lds(ins, tag)
    for si in range(16):
        ph, b = steps[si]; st = si & 1
        alist = list(range(0, 4) if ph == 0 else range(4, 8))
        mlist = list(range(0, 8) if ph == 0 else range(0, 4))
        nxt = loads(si + 1) if (si < 15 and si != 7) else []
        pairs = [(x, m) for m in mlist for x in alist if x + m <= 7]
        pairs.sort(key=lambda p: (max(p[0] - alist[0], p[1]), p[0]))
        for pi, (x, m) in enumerate(pairs):
            a.lds_wait([(si, 'a', x), (si, 'b', m)])
            nt = x + m
            a(f"v_mfma_f32_16x16x32_bf16 v[{ACC+4*nt}:{ACC+4*nt+3}], v[{AF+16*st+4*(x-alist[0])}:{AF+16*st+4*(x-alist[0])+3}], v[{BF+32*st+4*m}:{BF+32*st+4*m+3}], v[{ACC+4*nt}:{ACC+4*nt+3}]")
            if pi >= 2:
                for _ in range(2 if ph == 1 else 1):
                    if nxt:
                        ins, tag = nxt.pop(0); a.lds(ins, tag)
        while nxt:
            ins, tag = nxt.pop(0); a.lds(ins, tag)
        if si == 7:
            stamp(a, 6)
            a("s_barrier")
            stamp(a, 7)
            for ins, tag in loads(8): a.lds(ins, tag)
    stamp(a, 8)
    a(f"s_lshl_b32 s55, s27, 12\ns_add_u32 s55, s55, {WS_YT}")
    a("v_lshlrev_b32 v16, 5, v14\nv_lshlrev_b32 v18, 3, v15\nv_add_u32 v16, v16, v18")
    for nt in range(8):
        o = AF + 2 * nt
        a(f"v_cvt_pk_bf16_f32 v{o}, v{ACC+4*nt}, v{ACC+4*nt+1}\nv_cvt_pk_bf16_f32 v{o+1}, v{ACC+4*nt+2}, v{ACC+4*nt+3}")
        a(f"buffer_store_dwordx2 v[{o}:{o+1}], v16, s[16:19], s55 offen offset:{512*nt}")
    if PROF: a("s_waitcnt vmcnt(0)")
    stamp(a, 9)
    a(f"s_branch {end_label}")
    a(f"{L('helper')}:")
    a("s_nop 4")
    a("s_sub_u32 s27, s24, 4")
    a(f"s_lshl_b32 s28, s27, 18\ns_lshl_b32 s29, s{s_cw}, 3\ns_add_u32 s28, s28, s29")
    a("v_lshlrev_b32 v2, 12, v1")
    X = [[32 + 16 * p + 2 * (r + 3) for r in range(-3, 4)] for p in range(2)]
    for p in range(2):
        a(f"s_add_u32 s30, s28, {p * 1024 * 1024}")
        a("s_mov_b64 exec, 1")
        for r in (-3, -2, -1):
            a(f"s_add_u32 s31, s30, {r * 1024 & 0xffffffff}")
            a(f"v_mov_b32 v3, s31")
            a(f"buffer_load_dwordx2 v[{X[p][r+3]}:{X[p][r+3]+1}], v3, s[8:11], 0 offen")
        a("s_mov_b64 exec, -1")
        for r in range(4):
            a(f"buffer_load_dwordx2 v[{X[p][r+3]}:{X[p][r+3]+1}], v2, s[8:11], s30 offen offset:{r*1024}")
    a(f"v_lshrrev_b32 v4, 1, v1\nv_mul_u32_u24 v4, {U_CP}, v4\nv_and_b32 v5, 1, v1\nv_lshlrev_b32 v5, 4, v5\nv_add_u32 v4, v4, v5\nv_add_u32 v4, {C_U + 4096}, v4")
    a("v_mov_b32 v8, 0\nv_mov_b32 v9, 0\nv_mov_b32 v10, 0\nv_mov_b32 v11, 0")
    a(f"s_cmp_lg_u32 s27, 0\ns_cbranch_scc1 {L('nopad')}")
    a("s_mov_b64 exec, 0xffffffff")
    a("ds_write_b128 v4, v[8:11]")
    a("s_mov_b64 exec, -1")
    a(f"{L('nopad')}:")
    a(f"s_lshl_b32 s31, s27, 9\ns_sub_u32 s31, {C_U + 4088}, s31")
    a("v_lshlrev_b32 v5, 3, v1\nv_sub_u32 v5, s31, v5")
    a("s_mov_b32 s32, 0x05040100\ns_mov_b32 s33, 0x07060302")
    for p in range(2):
        if p == 0: stamp(a, 1)
        a(f"s_waitcnt vmcnt({7 if p == 0 else 0})")
        stamp(a, 2 + 2*p)
        for r in (-3, -2, -1):
            for q in range(2):
                a(f"v_mov_b32_dpp v{X[p][r+3]+q}, v{X[p][r+4+3]+q} wave_shr:1 row_mask:0xf bank_mask:0xf")
        ob = 64
        for ch in range(4):
            q = ch >> 1; sel = 32 + (ch & 1)
            for c in range(4):
                o = ob + 2 * ((ch * 4 + c) % 8)
                r0, r1, r2, r3 = [X[p][3 - c - k + 3] + q for k in range(4)]
                a(f"v_perm_b32 v{o}, v{r1}, v{r0}, s{sel}\nv_perm_b32 v{o+1}, v{r3}, v{r2}, s{sel}")
                a(f"ds_write_b64 v5, v[{o}:{o+1}] offset:{ch*U_CH + c*U_CP - 0}")
        a("s_waitcnt lgkmcnt(0)")
        stamp(a, 3 + 2*p)
        a("s_barrier")
        if p == 0: a("v_subrev_u32 v5, 2048, v5")
    a(f"s_branch {end_label}")

def gen_conv(a, name):
    kernel_begin(a, name)
    a(f"s_cmp_ge_u32 s2, 128\ns_cbranch_scc1 LC_end")
    srd(a, 8, K_U, 0); srd(a, 16, K_WS, 0)
    a("v_lshrrev_b32 v2, 6, v0\ns_nop 0\nv_readfirstlane_b32 s24, v2")
    a("s_and_b32 s3, s2, 7\ns_lshr_b32 s4, s2, 3\ns_lshl_b32 s25, s3, 4\ns_add_u32 s25, s25, s4")
    a("s_waitcnt lgkmcnt(0)")
    srd_fin(a, 8, 2048 * 1024); srd_fin(a, 16, WS_SIZE if not PROF else 0x1000000)
    stamp(a, 0); stamp_rt(a, 10)
    gen_conv_body(a, "LC", 25, "LC_fin")
    a("LC_fin:\ns_mov_b64 exec, -1")
    stamp_rt(a, 11)
    stamp_flush(a, 16, 24, 8)
    a("LC_end:\ns_endpgm")


F_WO = 0
F_KV = 65536
F_Y = F_KV + 34816
F_RED = F_Y + 8192
FIN_LDS = F_RED + 16384
def gen_final_body(a, P, s_tt, s_mt, end_label):
    L = lambda x: f"{P}_{x}"
    a("v_and_b32 v1, 63, v0")
    a("s_and_b32 s27, s24, 1\ns_lshr_b32 s28, s24, 1")
    a("v_lshlrev_b32 v2, 4, v1")
    a("s_lshl_b32 s29, s24, 10")
    for i in range(9):
        if i == 8:
            a(f"s_cmp_ge_u32 s24, 2\ns_cbranch_scc1 {L('kvdone')}")
        a(f"s_add_u32 s30, s29, {WS_KV + i*4096}\ns_add_u32 m0, s29, {F_KV + i*4096}")
        a("buffer_load_dwordx4 v2, s[16:19], s30 offen lds")
    a(f"{L('kvdone')}:")
    PQF = 64
    a(f"s_lshl_b32 s30, s{s_tt}, 1\ns_add_u32 s30, s30, s27\ns_lshl_b32 s30, s30, 15\ns_lshl_b32 s31, s28, 14\ns_add_u32 s30, s30, s31\ns_add_u32 s30, s30, {WS_PQ}")
    a("v_lshrrev_b32 v3, 3, v1\nv_lshlrev_b32 v3, 10, v3\nv_and_b32 v4, 7, v1\nv_bfe_u32 v5, v1, 4, 1\nv_lshlrev_b32 v5, 2, v5\nv_xor_b32 v4, v4, v5\nv_lshlrev_b32 v4, 4, v4\nv_add_u32 v3, v3, v4")
    a(f"s_lshl_b32 s31, s{s_mt}, 7\ns_lshl_b32 s32, s24, 13\ns_add_u32 s31, s31, s32")
    for n in range(16):
        a(f"buffer_load_dwordx4 v[{PQF+4*n}:{PQF+4*n+3}], v2, s[16:19], s30 offen offset:{0}" if False else "")
        if n % 4 == 0:
            pass
    for n in range(16):
        a(f"s_add_u32 s33, s30, {n*1024}")
        a(f"buffer_load_dwordx4 v[{PQF+4*n}:{PQF+4*n+3}], v2, s[16:19], s33 offen")
        a(f"s_add_u32 s33, s31, {n*32768}\ns_add_u32 m0, s29, {F_WO + n*4096}")
        a("buffer_load_dwordx4 v3, s[12:15], s33 offen lds")
    a("v_lshrrev_b32 v5, 3, v1\nv_lshlrev_b32 v5, 12, v5\nv_add_u32 v5, v5, v4")
    a(f"s_lshl_b32 s33, s{s_mt}, 18\ns_lshl_b32 s34, s{s_tt}, 7\ns_add_u32 s33, s33, s34\ns_lshl_b32 s34, s24, 15\ns_add_u32 s33, s33, s34\ns_add_u32 s33, s33, {WS_YT}")
    for n in range(2):
        a(f"s_add_u32 s34, s33, {n*4*8*4096}\ns_add_u32 m0, s29, {F_Y + n*4096}")
        a("buffer_load_dwordx4 v5, s[16:19], s34 offen lds")
    VG = 6
    a(f"v_and_b32 v7, 31, v1\nv_lshlrev_b32 v7, 2, v7\ns_lshl_b32 s33, s{s_tt}, 8\ns_lshl_b32 s34, s27, 7\ns_add_u32 s33, s33, s34\ns_add_u32 s33, s33, {WS_G}")
    a(f"buffer_load_dword v{VG}, v7, s[16:19], s33 offen")
    VKV = 8; VZ = 9; VWO = 10; VY = 11
    a(f"v_lshlrev_b32 v{VKV}, 2, v1\ns_lshl_b32 s33, s28, 14\ns_add_u32 s33, s33, {F_KV}\nv_add_u32 v{VKV}, s33, v{VKV}")
    a(f"v_bfe_u32 v12, v1, 4, 1\nv_lshlrev_b32 v12, 6, v12\nv_lshrrev_b32 v13, 5, v1\nv_lshlrev_b32 v13, 4, v13\nv_add_u32 v12, v12, v13")
    a(f"s_lshl_b32 s33, s28, 10\ns_add_u32 s33, s33, {F_KV + 32768}\nv_add_u32 v{VZ}, s33, v12")
    a("v_lshrrev_b32 v12, 5, v1\nv_lshlrev_b32 v12, 2, v12\nv_bfe_u32 v13, v1, 2, 2\nv_add_u32 v12, v12, v13\nv_lshlrev_b32 v12, 7, v12")
    a("v_bfe_u32 v14, v1, 4, 1\nv_lshlrev_b32 v14, 1, v14\nv_bfe_u32 v15, v1, 1, 1\nv_add_u32 v14, v14, v15")
    a("v_lshrrev_b32 v15, 1, v13\nv_lshlrev_b32 v15, 2, v15\nv_xor_b32 v14, v14, v15")
    a("v_and_b32 v16, 1, v1\nv_lshlrev_b32 v16, 3, v16")
    a(f"v_lshlrev_b32 v17, 4, v14\nv_add_u32 v17, v17, v16\nv_add_u32 v17, v17, v12\ns_lshl_b32 s33, s28, 15\nv_add_u32 v{VWO}, s33, v17")
    a(f"v_xor_b32 v14, 4, v14\nv_lshlrev_b32 v18, 4, v14\nv_add_u32 v18, v18, v16\nv_add_u32 v18, v18, v12\nv_add_u32 v{VWO+9}, s33, v18")
    VWO1 = VWO + 9
    a("v_bfe_u32 v14, v1, 4, 1\nv_lshlrev_b32 v14, 1, v14\nv_bfe_u32 v20, v1, 1, 1\nv_add_u32 v14, v14, v20\ns_lshl_b32 s33, s27, 2\nv_add_u32 v14, s33, v14\nv_xor_b32 v14, v14, v15")
    a(f"v_lshlrev_b32 v14, 4, v14\nv_add_u32 v14, v14, v16\nv_add_u32 v14, v14, v12\ns_lshl_b32 s33, s28, 12\ns_add_u32 s33, s33, {F_Y}\nv_add_u32 v{VY}, s33, v14")
    a("s_waitcnt vmcnt(0)\ns_barrier")
    ACC = 32
    XR = 128
    AFR = 144
    DN = 160
    OF = 192
    WF = 200
    a(f"s_mov_b32 s31, {EPS}")
    for hp in range(8):
        st = hp & 1
        for r in range(8): a(f"ds_read_b32 v{XR+r}, v{VKV} offset:{hp*2048 + r*256}")
        a(f"ds_read_b128 v[{XR+8}:{XR+11}], v{VZ} offset:{hp*128}\nds_read_b128 v[{XR+12}:{XR+15}], v{VZ} offset:{hp*128 + 32}")
        a("s_waitcnt lgkmcnt(0)")
        X = AFR + 8 * st; Z = X + 4
        for j in range(4):
            a(f"v_cvt_pk_bf16_f32 v{X+j}, v{XR+2*j}, v{XR+2*j+1}\nv_cvt_pk_bf16_f32 v{Z+j}, v{XR+8+2*j}, v{XR+8+2*j+1}")
        for j in range(4):
            a(f"v_permlane16_swap_b32 v{X+j}, v{Z+j}")
        for hh2 in range(2):
            h = 2 * hp + hh2
            Af = X if hh2 == 0 else Z
            D = DN + 16 * hh2
            a(f"v_mfma_f32_32x32x16_bf16 v[{D}:{D+15}], v[{Af}:{Af+3}], v[{PQF+4*h}:{PQF+4*h+3}], 0")
            for mt_ in range(2):
                w = WF + 8 * hh2 + 4 * mt_
                ad = VWO if mt_ == 0 else VWO1
                for t in range(2):
                    a(f"ds_read_b64_tr_b16 v[{w+2*t}:{w+2*t+1}], v{ad} offset:{h*2048 + t*1024}")
        for hh2 in range(2):
            h = 2 * hp + hh2
            D = DN + 16 * hh2; O = OF + 4 * hh2
            a(f"v_add_f32 v{D+8}, s31, v{D+8}\nv_rcp_f32 v{D+8}, v{D+8}")
            for r in range(8): a(f"v_mul_f32 v{D+r}, v{D+r}, v{D+8}")
            for j in range(4): a(f"v_cvt_pk_bf16_f32 v{O+j}, v{D+2*j}, v{D+2*j+1}")
        a("s_waitcnt lgkmcnt(0)")
        for hh2 in range(2):
            O = OF + 4 * hh2
            for mt_ in range(2):
                w = WF + 8 * hh2 + 4 * mt_
                first = (hp == 0 and hh2 == 0)
                c = "0" if first else f"v[{ACC+16*mt_}:{ACC+16*mt_+15}]"
                a(f"v_mfma_f32_32x32x16_bf16 v[{ACC+16*mt_}:{ACC+16*mt_+15}], v[{w}:{w+3}], v[{O}:{O+3}], {c}")
    a(f"v_lshlrev_b32 v12, 4, v1\ns_lshl_b32 s33, s24, 12\ns_add_u32 s33, s33, {F_RED}\nv_add_u32 v13, s33, v12")
    a(f"s_xor_b32 s34, s24, 2\ns_lshl_b32 s34, s34, 12\ns_add_u32 s34, s34, {F_RED}\nv_add_u32 v14, s34, v12")
    KEEP = 64; SEND = 80
    a(f"s_cmp_eq_u32 s28, 0\ns_cbranch_scc1 {L('hh0')}")
    for r in range(16): a(f"v_mov_b32 v{KEEP+r}, v{ACC+16+r}\nv_mov_b32 v{SEND+r}, v{ACC+r}")
    a(f"s_branch {L('hhj')}\n{L('hh0')}:\ns_nop 7\ns_nop 7")
    for r in range(16): a(f"v_mov_b32 v{KEEP+r}, v{ACC+r}\nv_mov_b32 v{SEND+r}, v{ACC+16+r}")
    a(f"{L('hhj')}:")
    for i in range(4): a(f"ds_write_b128 v13, v[{SEND+4*i}:{SEND+4*i+3}] offset:{1024*i}")
    YR = 96
    for g4 in range(4): a(f"ds_read_b64_tr_b16 v[{YR+2*g4}:{YR+2*g4+1}], v{VY} offset:{g4*1024}")
    a("s_waitcnt lgkmcnt(0)\ns_barrier")
    RX = 112
    for i in range(4): a(f"ds_read_b128 v[{RX+4*i}:{RX+4*i+3}], v14 offset:{1024*i}")
    a(f"v_sub_f32 v7, 1.0, v{VG}")
    a("s_waitcnt lgkmcnt(0)")
    OUTR = 128
    for g4 in range(4):
        for q in range(2):
            ylo = 136; yhi = 137
            a(f"v_lshlrev_b32 v{ylo}, 16, v{YR+2*g4+q}\nv_and_b32 v{yhi}, 0xffff0000, v{YR+2*g4+q}")
            r0 = 4 * g4 + 2 * q
            a(f"v_add_f32 v{KEEP+r0}, v{KEEP+r0}, v{RX+r0}\nv_add_f32 v{KEEP+r0+1}, v{KEEP+r0+1}, v{RX+r0+1}")
            a(f"v_mul_f32 v{KEEP+r0}, v7, v{KEEP+r0}\nv_mul_f32 v{KEEP+r0+1}, v7, v{KEEP+r0+1}")
            a(f"v_fma_f32 v{KEEP+r0}, v{VG}, v{ylo}, v{KEEP+r0}\nv_fma_f32 v{KEEP+r0+1}, v{VG}, v{yhi}, v{KEEP+r0+1}")
            a(f"v_cvt_pk_bf16_f32 v{OUTR+2*g4+q}, v{KEEP+r0}, v{KEEP+r0+1}")
    a("v_and_b32 v12, 31, v1\nv_lshlrev_b32 v12, 10, v12\nv_lshrrev_b32 v13, 5, v1\nv_lshlrev_b32 v13, 3, v13\nv_add_u32 v12, v12, v13")
    a(f"s_lshl_b32 s33, s{s_tt}, 16\ns_lshl_b32 s34, s27, 15\ns_add_u32 s33, s33, s34\ns_lshl_b32 s34, s{s_mt}, 7\ns_add_u32 s33, s33, s34\ns_lshl_b32 s34, s28, 6\ns_add_u32 s33, s33, s34")
    for g4 in range(4):
        a(f"buffer_store_dwordx2 v[{OUTR+2*g4}:{OUTR+2*g4+1}], v12, s[20:23], s33 offen offset:{16*g4}")

def gen_final(a, name):
    kernel_begin(a, name)
    a(f"s_cmp_ge_u32 s2, 256\ns_cbranch_scc1 LF_end")
    srd(a, 12, K_WO, 0); srd(a, 16, K_WS, 0); srd(a, 20, K_OUT, 0)
    a("v_lshrrev_b32 v2, 6, v0\ns_nop 0\nv_readfirstlane_b32 s24, v2")
    a("s_and_b32 s3, s2, 7\ns_lshr_b32 s4, s2, 3\ns_lshl_b32 s25, s3, 2\ns_lshr_b32 s5, s4, 3\ns_add_u32 s25, s25, s5\ns_and_b32 s26, s4, 7")
    a("s_waitcnt lgkmcnt(0)")
    srd_fin(a, 12, 512 * 1024); srd_fin(a, 16, WS_SIZE if not PROF else 0x1000000); srd_fin(a, 20, 2048 * 1024)
    stamp(a, 0); stamp_rt(a, 10)
    gen_final_body(a, "LF", 25, 26, "LF_fin")
    a("LF_fin:\ns_mov_b64 exec, -1")
    stamp_rt(a, 11)
    stamp_flush(a, 16, 24, 4)
    a("LF_end:\ns_endpgm")

def main(which, out):
    global PROF
    if which.endswith("+p"): PROF = True; which = which[:-2]
    a = A()
    if which == "gemm":
        file_begin(a, [("zero_kernel", 9, 256, 0), ("gemm_kernel", 128, 512, GEMM_LDS)])
        gen_zero(a, "zero_kernel"); gen_gemm(a, "gemm_kernel")
        kernel_desc(a, "zero_kernel", 8, 16); kernel_desc(a, "gemm_kernel", 168 if not PROF else 256, 48 if not PROF else 96)
    if which == "conv":
        file_begin(a, [("conv_kernel", 128, 512, CONV_LDS)])
        gen_conv(a, "conv_kernel")
        kernel_desc(a, "conv_kernel", 208 if not PROF else 256, 64 if not PROF else 96)
    if which == "all4":
        file_begin(a, [("zero_kernel", 9, 256, 0), ("gemm_kernel", 128, 512, GEMM_LDS), ("conv_kernel", 128, 512, CONV_LDS), ("final_kernel", 256, 256, FIN_LDS)])
        gen_zero(a, "zero_kernel"); gen_gemm(a, "gemm_kernel"); gen_conv(a, "conv_kernel"); gen_final(a, "final_kernel")
        kernel_desc(a, "zero_kernel", 8, 16); kernel_desc(a, "gemm_kernel", 168, 48); kernel_desc(a, "conv_kernel", 208, 64); kernel_desc(a, "final_kernel", 216 if not PROF else 256, 48 if not PROF else 96)
    open(out, "w").write(a.text())
if __name__ == "__main__":
    main(sys.argv[1], sys.argv[2])
```

```python
import sys; sys.path.insert(0, "dev")
from asmlib import *
import gen
def gen_empty(a, nm):
    kernel_begin(a, nm); a("s_endpgm")
def gen_probe(a, nm, nit=32, ptr=72):
    kernel_begin(a, nm)
    a("s_cmp_ge_u32 s2, 256\ns_cbranch_scc1 LP_end")
    a(f"s_load_dwordx2 s[40:41], s[0:1], {ptr}\ns_waitcnt lgkmcnt(0)\ns_mov_b32 s42, {2048*1024}\ns_mov_b32 s43, 0x20000")
    a("v_and_b32 v1, 63, v0\nv_lshrrev_b32 v2, 6, v0\ns_nop 0\nv_readfirstlane_b32 s24, v2")
    a("s_and_b32 s31, s2, 7\ns_lshr_b32 s32, s2, 3\ns_lshr_b32 s33, s31, 1\ns_lshl_b32 s33, s33, 2\ns_lshr_b32 s34, s32, 3\ns_add_u32 s33, s33, s34\ns_lshl_b32 s30, s33, 17")
    a("v_lshlrev_b32 v3, 4, v1\ns_lshl_b32 s26, s24, 10\ns_add_u32 s26, s26, s30\nv_add_u32 v3, s26, v3")
    a("s_lshl_b32 s27, s24, 10\ns_mov_b32 s28, 0")
    for it in range(nit):
        a("s_mov_b32 m0, s27\ns_add_u32 s27, s27, 4096\ns_and_b32 s27, s27, 65535")
        a("buffer_load_dwordx4 v3, s[40:43], s28 offen lds")
        a("s_add_u32 s28, s28, 4096")
    a("s_waitcnt vmcnt(0)")
    a("LP_end:\ns_endpgm")
def build(out, pre=[], post=[]):
    a = A()
    base = [("zero_kernel", 9, 256, 0), ("gemm_kernel", 128, 512, gen.GEMM_LDS), ("conv_kernel", 128, 512, gen.CONV_LDS), ("final_kernel", 256, 256, gen.FIN_LDS)]
    geo = {"empty_kernel": ("empty_kernel", 256, 256, 0), "probe_kernel": ("probe_kernel", 256, 256, 65536), "conv_kernel": base[2]}
    file_begin(a, [geo[x] for x in pre] + base + [geo[x] for x in post])
    gen.gen_zero(a, "zero_kernel"); gen.gen_gemm(a, "gemm_kernel"); gen.gen_conv(a, "conv_kernel"); gen.gen_final(a, "final_kernel")
    ex = set(pre + post)
    if "empty_kernel" in ex: gen_empty(a, "empty_kernel")
    if "probe_kernel" in ex: gen_probe(a, "probe_kernel")
    kernel_desc(a, "zero_kernel", 8, 16); kernel_desc(a, "gemm_kernel", 168, 48); kernel_desc(a, "conv_kernel", 208, 64); kernel_desc(a, "final_kernel", 216, 48)
    if "empty_kernel" in ex: kernel_desc(a, "empty_kernel", 8, 16)
    if "probe_kernel" in ex: kernel_desc(a, "probe_kernel", 8, 48)
    open(out, "w").write(a.text())
D = "var/"
import os; os.makedirs(D, exist_ok=True)
build(D + "v0.s")
build(D + "v1.s", post=["empty_kernel"])
build(D + "v2.s", pre=["probe_kernel"])
build(D + "v3.s", pre=["empty_kernel"])
build(D + "v4.s", post=["conv_kernel"])
build(D + "v5.s", post=["probe_kernel"])
```

```python
import sys; sys.path.insert(0, "dev")
from asmlib import *
import gen
def gen_empty(a, nm):
    kernel_begin(a, nm); a("s_endpgm")
def gen_probe(a, nm, nit=32, ptr=72):
    kernel_begin(a, nm)
    a("s_cmp_ge_u32 s2, 256\ns_cbranch_scc1 LP_end")
    a(f"s_load_dwordx2 s[40:41], s[0:1], {ptr}\ns_waitcnt lgkmcnt(0)\ns_mov_b32 s42, {2048*1024}\ns_mov_b32 s43, 0x20000")
    a("v_and_b32 v1, 63, v0\nv_lshrrev_b32 v2, 6, v0\ns_nop 0\nv_readfirstlane_b32 s24, v2")
    a("s_and_b32 s31, s2, 7\ns_lshr_b32 s32, s2, 3\ns_lshr_b32 s33, s31, 1\ns_lshl_b32 s33, s33, 2\ns_lshr_b32 s34, s32, 3\ns_add_u32 s33, s33, s34\ns_lshl_b32 s30, s33, 17")
    a("v_lshlrev_b32 v3, 4, v1\ns_lshl_b32 s26, s24, 10\ns_add_u32 s26, s26, s30\nv_add_u32 v3, s26, v3")
    a("s_lshl_b32 s27, s24, 10\ns_mov_b32 s28, 0")
    for it in range(nit):
        a("s_mov_b32 m0, s27\ns_add_u32 s27, s27, 4096\ns_and_b32 s27, s27, 65535")
        a("buffer_load_dwordx4 v3, s[40:43], s28 offen lds")
        a("s_add_u32 s28, s28, 4096")
    a("s_waitcnt vmcnt(0)")
    a("LP_end:\ns_endpgm")
def build(out, pre=[], post=[]):
    a = A()
    base = [("zero_kernel", 9, 256, 0), ("gemm_kernel", 128, 512, gen.GEMM_LDS), ("conv_kernel", 128, 512, gen.CONV_LDS), ("final_kernel", 256, 256, gen.FIN_LDS)]
    geo = {"empty_kernel": ("empty_kernel", 256, 256, 0), "probe_kernel": ("probe_kernel", 256, 256, 65536), "conv_kernel": base[2]}
    file_begin(a, [geo[x] for x in pre] + base + [geo[x] for x in post])
    gen.gen_zero(a, "zero_kernel"); gen.gen_gemm(a, "gemm_kernel"); gen.gen_conv(a, "conv_kernel"); gen.gen_final(a, "final_kernel")
    ex = set(pre + post)
    if "empty_kernel" in ex: gen_empty(a, "empty_kernel")
    if "probe_kernel" in ex: gen_probe(a, "probe_kernel")
    kernel_desc(a, "zero_kernel", 8, 16); kernel_desc(a, "gemm_kernel", 168, 48); kernel_desc(a, "conv_kernel", 208, 64); kernel_desc(a, "final_kernel", 216, 48)
    if "empty_kernel" in ex: kernel_desc(a, "empty_kernel", 8, 16)
    if "probe_kernel" in ex: kernel_desc(a, "probe_kernel", 8, 48)
    open(out, "w").write(a.text())
D = "var/"
import os; os.makedirs(D, exist_ok=True)
build(D + "v0.s")
build(D + "v1.s", post=["empty_kernel"])
build(D + "v2.s", pre=["probe_kernel"])
build(D + "v3.s", pre=["empty_kernel"])
build(D + "v4.s", post=["conv_kernel"])
build(D + "v5.s", post=["probe_kernel"])
def gen_sled(a, nm, n):
    kernel_begin(a, nm)
    for i in range(n):
        a(f"v_add3_u32 v{1 + i % 4}, v0, v0, v0")
    a("s_endpgm")
def build2(out, n, nwg=256):
    a = A()
    base = [("zero_kernel", 9, 256, 0), ("gemm_kernel", 128, 512, gen.GEMM_LDS), ("conv_kernel", 128, 512, gen.CONV_LDS), ("final_kernel", 256, 256, gen.FIN_LDS)]
    file_begin(a, base + [("sled_kernel", nwg, 256, 0)])
    gen.gen_zero(a, "zero_kernel"); gen.gen_gemm(a, "gemm_kernel"); gen.gen_conv(a, "conv_kernel"); gen.gen_final(a, "final_kernel")
    gen_sled(a, "sled_kernel", n)
    kernel_desc(a, "zero_kernel", 8, 16); kernel_desc(a, "gemm_kernel", 168, 48); kernel_desc(a, "conv_kernel", 208, 64); kernel_desc(a, "final_kernel", 216, 48)
    kernel_desc(a, "sled_kernel", 8, 16)
    open(out, "w").write(a.text())
build2(D + "s512.s", 512)
build2(D + "s1024.s", 1024)
build2(D + "s2048.s", 2048)
for n in (512, 1024, 2048):
    a = A(); file_begin(a, [("sled_kernel", 256, 256, 0)]); gen_sled(a, "sled_kernel", n); kernel_desc(a, "sled_kernel", 8, 16)
    open(D + f"sled{n}.s", "w").write(a.text())
```

```python
import sys
sys.path.insert(0, "dev")
from asmlib import *

WS_KV = 0
WS_Z = 32768
WS_G = 0x9000
WS_PQ = 0x10000
WS_YT = WS_PQ + 0x200000
WS_SIZE = WS_YT + 0x200000
K_U, K_ARE, K_AIM, K_BRE, K_BIM, K_CRE, K_CIM, K_LDT, K_DSK, K_BX, K_WQKV, K_WO, K_GW, K_OUT, K_DBG, K_WS = [8 * i for i in range(16)]
LOG2E = 0x3fb8aa3b
EPS = 0x358637bd

def phi_inplace(a, regs, tmp, s_log2e, s_eps):
    n = len(regs); T = len(tmp)
    for g in range(0, n, T):
        grp = regs[g:g + T]
        for j, r in enumerate(grp): a(f"v_mul_f32 v{tmp[j]}, s{s_log2e}, v{r}")
        for j, r in enumerate(grp): a(f"v_min_f32 v{tmp[j]}, 0, v{tmp[j]}")
        for j, r in enumerate(grp): a(f"v_exp_f32 v{tmp[j]}, v{tmp[j]}")
        for j, r in enumerate(grp): a(f"v_max_f32 v{r}, 0, v{r}")
        for j, r in enumerate(grp): a(f"v_add_f32 v{tmp[j]}, s{s_eps}, v{tmp[j]}")
        for j, r in enumerate(grp): a(f"v_add_f32 v{r}, v{r}, v{tmp[j]}")

PROF = False
ZFLAG = False
NZ = 34
WS_PROF = 0x800000
NST = 12
def stamp(a, i):
    if PROF:
        a(f"s_memtime s[{64+2*i}:{65+2*i}]")
def stamp_rt(a, i):
    if PROF:
        a(f"s_memrealtime s[{64+2*i}:{65+2*i}]")
def stamp_flush(a, ws_srd, s_wave, nwaves):
    if PROF:
        a("s_waitcnt lgkmcnt(0)")
        a(f"s_mul_i32 s90, s2, {nwaves}\ns_add_u32 s90, s90, s{s_wave}\ns_lshl_b32 s90, s90, 6\ns_add_u32 s90, s90, {WS_PROF}")
        a("s_mov_b64 exec, 1")
        a("v_mov_b32 v250, 0")
        for i in range(NST):
            a(f"v_mov_b32 v251, s{64+2*i}")
            a(f"buffer_store_dword v251, v250, s[{ws_srd}:{ws_srd+3}], s90 offen offset:{4*i}")
            a("s_nop 1")
        a("s_waitcnt vmcnt(0)")
def gen_zero(a, name):
    kernel_begin(a, name)
    a("s_cmp_ge_u32 s2, 9\ns_cbranch_scc1 LZ_end")
    srd(a, 8, K_WS, 0); a("s_waitcnt lgkmcnt(0)"); srd_fin(a, 8, 36864)
    a("s_lshl_b32 s3, s2, 12\nv_lshlrev_b32 v1, 4, v0\nv_add_u32 v1, s3, v1")
    a("v_mov_b32 v4, 0\nv_mov_b32 v5, 0\nv_mov_b32 v6, 0\nv_mov_b32 v7, 0")
    a("buffer_store_dwordx4 v[4:7], v1, s[8:11], 0 offen")
    a("LZ_end:\ns_endpgm")

XS = [0, 16384, 32768]
WSL = [49152, 49152 + 24576, 49152 + 49152]
GEMM_LDS = 49152 + 3 * 24576
def gen_gemm_body(a, P, s_rt, s_cb, end_label):
    L = lambda x: f"{P}_{x}"
    a(f"v_and_b32 v1, 63, v0")
    a(f"s_cmp_ge_u32 s24, 4\ns_cbranch_scc1 {L('loader')}")
    a("s_and_b32 s27, s24, 1\ns_lshr_b32 s28, s24, 1")
    VX = [2, 3, 4, 5]; VW = 6; VW2 = 7
    a("v_and_b32 v8, 31, v1\nv_lshrrev_b32 v9, 5, v1")
    a("v_lshrrev_b32 v10, 1, v8\nv_and_b32 v10, 7, v10")
    a("v_lshlrev_b32 v11, 7, v8\ns_lshl_b32 s29, s27, 13\nv_add_u32 v11, s29, v11")
    for ks in range(4):
        a(f"v_add_u32 v12, {2*ks}, v9\nv_xor_b32 v12, v12, v10\nv_lshlrev_b32 v12, 4, v12\nv_add_u32 v{VX[ks]}, v11, v12")
    a("v_lshrrev_b32 v8, 5, v1")
    a("v_bfe_u32 v9, v1, 2, 2")
    a("v_lshlrev_b32 v10, 3, v8\nv_add_u32 v10, v10, v9\nv_lshlrev_b32 v10, 7, v10")
    a("v_bfe_u32 v11, v1, 4, 1\nv_lshlrev_b32 v11, 1, v11")
    a("v_bfe_u32 v12, v1, 1, 1\nv_add_u32 v11, v11, v12")
    a("s_lshl_b32 s29, s28, 2\nv_add_u32 v11, s29, v11")
    a("v_lshrrev_b32 v12, 1, v9\nv_lshlrev_b32 v12, 2, v12\nv_xor_b32 v11, v11, v12\nv_lshlrev_b32 v11, 4, v11")
    a("v_and_b32 v12, 1, v1\nv_lshlrev_b32 v12, 3, v12")
    a(f"v_add_u32 v10, v10, v11\nv_add_u32 v10, v10, v12\nv_add_u32 v{VW}, {WSL[0]}, v10\nv_add_u32 v{VW2}, {WSL[2]}, v10")
    ACC = 32
    QT = [ACC, ACC + 16]; KK = [ACC + 32, ACC + 48]; VV = [ACC + 64, ACC + 80]
    FR = 128
    def fx(s_, i): return FR + 20 * s_ + 4 * i
    def fw(s_, g): return FR + 20 * s_ + 8 + 4 * g
    def reads(sig):
        c, ks = divmod(sig, 4); st = sig & 1; sl = c % 3
        lst = []
        wa = VW if sl < 2 else VW2
        wo_ = (24576 if sl == 1 else 0) + ks * 2048
        lst.append((f"ds_read_b128 v[{fx(st,0)}:{fx(st,0)+3}], v{VX[ks]} offset:{XS[sl]}", (sig, 'x0')))
        for t in range(2): lst.append((f"ds_read_b64_tr_b16 v[{fw(st,0)+2*t}:{fw(st,0)+2*t+1}], v{wa} offset:{wo_ + t*512}", (sig, 'w0')))
        for t in range(2): lst.append((f"ds_read_b64_tr_b16 v[{fw(st,1)+2*t}:{fw(st,1)+2*t+1}], v{wa} offset:{wo_ + 8192 + t*512}", (sig, 'w1')))
        for t in range(2): lst.append((f"ds_read_b64_tr_b16 v[{fw(st,2)+2*t}:{fw(st,2)+2*t+1}], v{wa} offset:{wo_ + 16384 + t*512}", (sig, 'w2')))
        lst.append((f"ds_read_b128 v[{fx(st,1)}:{fx(st,1)+3}], v{VX[ks]} offset:{XS[sl] + 4096}", (sig, 'x1')))
        return lst
    def mf(D, A_, B_, first):
        c = "0" if first else f"v[{D}:{D+15}]"
        return f"v_mfma_f32_32x32x16_bf16 v[{D}:{D+15}], v[{A_}:{A_+3}], v[{B_}:{B_+3}], {c}"
    a.lds_reset()
    stamp(a, 1)
    a("s_barrier")
    stamp(a, 2)
    for ins, tag in reads(0): a.lds(ins, tag)
    for sig in range(32):
        c, ks = divmod(sig, 4); st = sig & 1; first = (sig == 0)
        ms = [(mf(QT[0], fw(st,0), fx(st,0), first), [(sig,'x0'), (sig,'w0')]),
              (mf(KK[0], fx(st,0), fw(st,1), first), [(sig,'w1')]),
              (mf(VV[0], fx(st,0), fw(st,2), first), [(sig,'w2')]),
              (mf(QT[1], fw(st,0), fx(st,1), first), [(sig,'x1')]),
              (mf(KK[1], fx(st,1), fw(st,1), first), []),
              (mf(VV[1], fx(st,1), fw(st,2), first), [])]
        nxt = reads(sig + 1) if sig < 31 else []
        newchunk = (ks == 3 and c < 7)
        for mi, (m, deps) in enumerate(ms):
            if deps: a.lds_wait(deps)
            a(m)
            if mi == 0 and newchunk:
                a.lds_wait(None)
                a("s_barrier")
            take = {0: 3, 1: 2, 2: 2, 3: 1}.get(mi, 0)
            for _ in range(take):
                if nxt:
                    ins, tag = nxt.pop(0); a.lds(ins, tag)
        assert not nxt
        if sig == 15: stamp(a, 3)
    stamp(a, 4)
    a(f"s_mov_b32 s30, {LOG2E}\ns_mov_b32 s31, {EPS}")
    TMP = list(range(8, 16))
    kregs = list(range(KK[0], KK[0] + 32))
    phi_inplace(a, kregs, TMP, 30, 31)
    ZS = 16
    a(f"v_add_f32 v{ZS}, v{kregs[0]}, v{kregs[1]}\nv_add_f32 v{ZS+1}, v{kregs[2]}, v{kregs[3]}")
    for j in range(4, 32, 2):
        a(f"v_add_f32 v{ZS}, v{ZS}, v{kregs[j]}\nv_add_f32 v{ZS+1}, v{ZS+1}, v{kregs[j+1]}")
    a(f"v_add_f32 v{ZS}, v{ZS}, v{ZS+1}")
    a(f"v_mov_b32 v{ZS+1}, v{ZS}")
    a(f"v_permlane32_swap_b32 v{ZS}, v{ZS+1}")
    a(f"v_add_f32 v{ZS}, v{ZS}, v{ZS+1}")
    PK = FR; PV = FR + 16
    for i in range(2):
        for j in range(8):
            a(f"v_cvt_pk_bf16_f32 v{PK + 8*i + j}, v{KK[i] + 2*j}, v{KK[i] + 2*j + 1}")
            a(f"v_cvt_pk_bf16_f32 v{PV + 8*i + j}, v{VV[i] + 2*j}, v{VV[i] + 2*j + 1}")
    KVD = KK[0]
    for i in range(2):
        for h in range(2):
            first = (i == 0 and h == 0)
            cc = "0" if first else f"v[{KVD}:{KVD+15}]"
            a(f"v_mfma_f32_32x32x16_bf16 v[{KVD}:{KVD+15}], v[{PK+8*i+4*h}:{PK+8*i+4*h+3}], v[{PV+8*i+4*h}:{PV+8*i+4*h+3}], {cc}")
    qregs = list(range(QT[0], QT[0] + 32))
    phi_inplace(a, qregs, TMP, 30, 31)
    stamp(a, 5)
    a("v_and_b32 v8, 16, v1\nv_cmp_eq_u32 vcc, 0, v8")
    SEL = VV[0]
    for r in range(8):
        a(f"v_cndmask_b32 v{SEL + r}, v{KVD + 8 + r}, v{KVD + r}, vcc")
    if ZFLAG:
        a(f"{L('zpoll')}:")
        a("v_mov_b32 v8, 0\nglobal_load_dword v8, v8, s[38:39] sc1\ns_waitcnt vmcnt(0)\nv_readfirstlane_b32 s34, v8")
        a(f"s_cmp_ge_u32 s34, {NZ}\ns_cbranch_scc0 {L('zpoll')}")
    a(f"s_lshl_b32 s32, s{s_cb}, 1\ns_add_u32 s32, s32, s28")
    a(f"s_lshl_b32 s33, s32, 11")
    a("v_lshlrev_b32 v9, 2, v1")
    for r in range(8):
        a(f"buffer_atomic_add_f32 v{SEL + r}, v9, s[16:19], s33 offen offset:{256*r}")
    a(f"s_lshl_b32 s33, s32, 7\ns_add_u32 s33, s33, {WS_Z}")
    a("s_mov_b64 exec, 0xffffffff")
    a(f"buffer_atomic_add_f32 v{ZS}, v9, s[16:19], s33 offen")
    a("s_mov_b64 exec, -1")
    PQR = FR
    for i in range(2):
        for j in range(8):
            a(f"v_cvt_pk_bf16_f32 v{PQR + 8*i + j}, v{QT[i] + 2*j}, v{QT[i] + 2*j + 1}")
    a(f"s_lshl_b32 s33, s{s_rt}, 2\ns_lshl_b32 s34, s27, 1\ns_add_u32 s33, s33, s34\ns_lshl_b32 s33, s33, 15")
    a(f"s_lshl_b32 s34, s32, 11\ns_add_u32 s33, s33, s34\ns_add_u32 s33, s33, {WS_PQ}")
    a("v_lshlrev_b32 v9, 4, v1")
    for i in range(2):
        for h in range(2):
            if i == 1 and h == 0: a("s_add_u32 s33, s33, 32768")
            a(f"buffer_store_dwordx4 v[{PQR+8*i+4*h}:{PQR+8*i+4*h+3}], v9, s[16:19], s33 offen offset:{1024*h}")
    stamp(a, 6)
    if PROF: a("s_waitcnt vmcnt(0)")
    stamp(a, 7)
    a(f"s_branch {end_label}")
    a(f"{L('loader')}:")
    a("s_nop 4")
    a("s_sub_u32 s27, s24, 4")
    a("v_lshrrev_b32 v8, 3, v1\nv_and_b32 v9, 7, v1\nv_lshrrev_b32 v10, 4, v1")
    a("v_xor_b32 v11, v9, v10\nv_lshlrev_b32 v11, 4, v11\nv_lshlrev_b32 v12, 10, v8\nv_add_u32 v2, v11, v12")
    a("v_add_u32 v10, 4, v10\nv_xor_b32 v11, v9, v10\nv_lshlrev_b32 v11, 4, v11\nv_add_u32 v3, v11, v12")
    a("v_bfe_u32 v10, v1, 4, 1\nv_lshlrev_b32 v10, 2, v10\nv_xor_b32 v11, v9, v10\nv_lshlrev_b32 v11, 4, v11")
    a("v_mul_u32_u24 v12, 3072, v8\nv_add_u32 v4, v11, v12")
    a(f"s_lshl_b32 s28, s{s_rt}, 17\ns_lshl_b32 s29, s27, 15\ns_add_u32 s28, s28, s29")
    a(f"s_mul_i32 s29, s27, {16*3072}\ns_lshl_b32 s30, s{s_cb}, 7\ns_add_u32 s29, s29, s30")
    a("s_lshl_b32 s31, s27, 12")
    a("s_lshl_b32 s32, s27, 11")
    GW = 32
    a(f"s_cmp_lg_u32 s27, 0\ns_cbranch_scc1 {L('nogate0')}")
    a("v_and_b32 v8, 3, v1\nv_lshlrev_b32 v9, 5, v8")
    for c in range(8):
        a(f"buffer_load_dwordx4 v[{GW+8*c}:{GW+8*c+3}], v9, s[20:23], 0 offen offset:{128*c}")
        a(f"buffer_load_dwordx4 v[{GW+8*c+4}:{GW+8*c+7}], v9, s[20:23], 0 offen offset:{128*c+16}")
    a(f"v_lshrrev_b32 v10, 2, v1\ns_lshl_b32 s33, s{s_cb}, 4\nv_add_u32 v10, s33, v10")
    a("v_lshrrev_b32 v11, 1, v10\nv_and_b32 v11, 7, v11\nv_lshlrev_b32 v12, 1, v8")
    a("v_xor_b32 v13, v12, v11\nv_lshlrev_b32 v13, 4, v13\nv_lshlrev_b32 v14, 7, v10\nv_add_u32 v5, v13, v14")
    a("v_add_u32 v12, 1, v12\nv_xor_b32 v13, v12, v11\nv_lshlrev_b32 v13, 4, v13\nv_add_u32 v6, v13, v14")
    a("v_mov_b32 v7, 0")
    a(f"{L('nogate0')}:")
    a("s_nop 1")
    def issue(c):
        sl = c % 3
        for ii in range(4):
            a(f"s_add_u32 s33, s28, {ii*8192 + 128*c}")
            a(f"s_add_u32 m0, s31, {XS[sl] + ii*1024}")
            a("s_nop 0")
            a(f"buffer_load_dwordx4 v{2 + (ii & 1)}, s[8:11], s33 offen lds")
        for sg in range(3):
            for jj in range(2):
                a(f"s_add_u32 s33, s29, {(64*c + 8*jj)*3072 + 1024*sg}")
                a(f"s_add_u32 m0, s32, {WSL[sl] + sg*8192 + jj*1024}")
                a("s_nop 0")
                a(f"buffer_load_dwordx4 v4, s[12:15], s33 offen lds")
    def gate(c):
        sl = c % 3
        lab = L(f'ng{c}')
        a(f"s_cmp_lg_u32 s27, 0\ns_cbranch_scc1 {lab}")
        a(f"ds_read_b128 v[16:19], v5 offset:{XS[sl]}\nds_read_b128 v[20:23], v6 offset:{XS[sl]}\ns_waitcnt lgkmcnt(0)")
        for j in range(8):
            a(f"v_dot2c_f32_bf16 v7, v{16+j}, v{GW + 8*c + j}")
        a(f"{lab}:")
    issue(0); issue(1)
    stamp(a, 1)
    for c in range(8):
        a(f"s_waitcnt vmcnt({10 if c < 7 else 0})")
        if c < 6: stamp(a, 2 + c)
        a("s_barrier")
        if c <= 5: issue(c + 2)
        gate(c)
    a(f"s_cmp_lg_u32 s27, 0\ns_cbranch_scc1 {end_label}")
    a("v_add_f32_dpp v7, v7, v7 quad_perm:[1,0,3,2] row_mask:0xf bank_mask:0xf")
    a("v_add_f32_dpp v7, v7, v7 quad_perm:[2,3,0,1] row_mask:0xf bank_mask:0xf")
    a(f"s_mov_b32 s30, 0xbfb8aa3b\nv_mul_f32 v7, s30, v7\nv_exp_f32 v7, v7\nv_add_f32 v7, 1.0, v7\nv_rcp_f32 v7, v7")
    a(f"s_lshl_b32 s33, s{s_rt}, 9\ns_lshl_b32 s34, s{s_cb}, 6\ns_add_u32 s33, s33, s34\ns_add_u32 s33, s33, {WS_G}")
    a("v_and_b32 v8, 3, v1\nv_cmp_eq_u32 vcc, 0, v8\nv_and_b32 v9, 60, v1")
    a("s_and_saveexec_b64 s[36:37], vcc")
    a(f"s_cbranch_execz {end_label}")
    a("buffer_store_dword v7, v9, s[16:19], s33 offen")
    a(f"s_branch {end_label}")

def gen_gemm(a, name):
    kernel_begin(a, name)
    a(f"s_cmp_ge_u32 s2, 128\ns_cbranch_scc1 LG_end")
    srd(a, 8, K_U, 0); srd(a, 12, K_WQKV, 0); srd(a, 16, K_WS, 0); srd(a, 20, K_GW, 0)
    a("v_lshrrev_b32 v2, 6, v0\ns_nop 0\nv_readfirstlane_b32 s24, v2")
    a("s_and_b32 s3, s2, 7\ns_lshr_b32 s4, s2, 3")
    a("s_lshr_b32 s25, s3, 1\ns_lshl_b32 s25, s25, 2\ns_lshr_b32 s5, s4, 2\ns_add_u32 s25, s25, s5")
    a("s_and_b32 s26, s3, 1\ns_lshl_b32 s26, s26, 2\ns_and_b32 s5, s4, 3\ns_add_u32 s26, s26, s5")
    a("s_waitcnt lgkmcnt(0)")
    srd_fin(a, 8, 2048 * 1024); srd_fin(a, 12, 512 * 3072); srd_fin(a, 16, WS_SIZE if not PROF else 0x1000000); srd_fin(a, 20, 1024)
    stamp(a, 0); stamp_rt(a, 10)
    gen_gemm_body(a, "LG", 25, 26, "LG_fin")
    a("LG_fin:\ns_mov_b64 exec, -1")
    stamp_rt(a, 11)
    stamp_flush(a, 16, 24, 8)
    a("LG_end:\ns_endpgm")


E_RS = 544
E_CH = 2 * 16 * E_RS
C_E = 0
C_KF = 4 * E_CH
KF_CH = 4608
C_TT = C_KF + 4 * KF_CH
TT_CH = 2048
C_U = C_TT + 4 * TT_CH
U_CP = 4160
U_CH = 4 * U_CP
CONV_LDS = C_U + 4 * U_CH
INV2PI = 0x3e22f983
def cmul(a, d, x, y, t):
    a(f"v_pk_mul_f32 v[{t}:{t+1}], v[{x}:{x+1}], v[{y}:{y+1}] op_sel:[0,0] op_sel_hi:[0,1]")
    a(f"v_pk_fma_f32 v[{d}:{d+1}], v[{x}:{x+1}], v[{y}:{y+1}], v[{t}:{t+1}] op_sel:[1,1,0] op_sel_hi:[1,0,1] neg_lo:[1,0,0]")

def gen_conv_body(a, P, s_cw, end_label):
    L = lambda x: f"{P}_{x}"
    a("v_and_b32 v1, 63, v0")
    a(f"s_cmp_ge_u32 s24, 4\ns_cbranch_scc1 {L('helper')}")
    a(f"s_lshl_b32 s27, s{s_cw}, 2\ns_add_u32 s27, s27, s24")
    for i, k in enumerate((K_ARE, K_AIM, K_BRE, K_BIM, K_CRE, K_CIM)):
        a(f"s_load_dwordx2 s[{28+2*i}:{29+2*i}], s[0:1], {k}")
    a(f"s_load_dwordx2 s[40:41], s[0:1], {K_LDT}\ns_load_dwordx2 s[42:43], s[0:1], {K_DSK}")
    a("s_lshl_b32 s44, s27, 8\nv_lshlrev_b32 v2, 2, v1\nv_add_u32 v2, s44, v2")
    a("s_waitcnt lgkmcnt(0)")
    for i in range(6):
        a(f"global_load_dword v{4+i}, v2, s[{28+2*i}:{29+2*i}]")
    a("s_lshr_b32 s45, s27, 1\ns_lshl_b32 s45, s45, 2")
    a("s_add_u32 s40, s40, s45\ns_addc_u32 s41, s41, 0\ns_add_u32 s42, s42, s45\ns_addc_u32 s43, s43, 0")
    a("s_load_dword s46, s[40:41], 0\ns_load_dword s47, s[42:43], 0")
    VEW = 12
    VER = 13
    a(f"s_mul_i32 s48, s24, {E_CH}")
    a(f"v_lshlrev_b32 v{VEW}, 3, v1\nv_add_u32 v{VEW}, s48, v{VEW}")
    a(f"v_and_b32 v14, 15, v1\nv_lshrrev_b32 v15, 4, v1")
    a(f"v_mul_u32_u24 v{VER}, {E_RS}, v14\nv_lshlrev_b32 v16, 4, v15\nv_add_u32 v{VER}, v{VER}, v16\nv_add_u32 v{VER}, s48, v{VER}")
    a(f"s_mul_i32 s49, s24, {KF_CH}\ns_add_u32 s49, s49, {C_KF}")
    a("v_mov_b32 v20, 0\nv_mov_b32 v21, 0\nv_mov_b32 v22, 0\nv_mov_b32 v23, 0")
    a("v_lshlrev_b32 v16, 4, v1\nv_add_u32 v16, s49, v16")
    a("s_mov_b32 exec_lo, 0x3fffffff\ns_mov_b32 exec_hi, 0")
    a("ds_write_b128 v16, v[20:23]")
    a("s_mov_b64 exec, -1")
    a("s_waitcnt lgkmcnt(0)")
    a("s_and_b32 s45, s27, 1\ns_lshl_b32 s45, s45, 4")
    a("s_lshr_b32 s46, s46, s45\ns_lshl_b32 s46, s46, 16\ns_lshr_b32 s47, s47, s45\ns_lshl_b32 s47, s47, 16")
    a(f"s_mov_b32 s50, {LOG2E}\ns_mov_b32 s51, 0x32a57060")
    a("v_mov_b32 v16, s46\nv_mul_f32 v17, s50, v16\nv_fma_f32 v18, v16, s50, -v17\nv_fma_f32 v18, v16, s51, v18")
    a("v_exp_f32 v17, v17\nv_mul_f32 v18, 0x3f317218, v18\nv_fma_f32 v17, v17, v18, v17")
    a("v_cvt_pk_bf16_f32 v17, v17, v17\nv_and_b32 v17, 0xffff0000, v17")
    DT = 17
    a("s_waitcnt vmcnt(0)")
    stamp(a, 1)
    MB = [32, 80]
    o_ab, o_c, o_w1, o_w8, o_w128, o_L, o_P, o_W, o_t, o_u = 0, 2, 4, 6, 8, 10, 12, 28, 30, 32
    for m in range(2):
        B = MB[m]; U = B + o_u
        for i in range(6):
            if m == 0: a(f"v_lshlrev_b32 v{U+i}, 16, v{4+i}")
            else: a(f"v_and_b32 v{U+i}, 0xffff0000, v{4+i}")
        a(f"v_mul_f32 v{U+0}, v{DT}, v{U+0}\nv_mul_f32 v{U+1}, v{DT}, v{U+1}\nv_mul_f32 v{U+2}, v{DT}, v{U+2}\nv_mul_f32 v{U+3}, v{DT}, v{U+3}")
        a(f"v_mul_f32 v{B+o_ab}, s50, v{U+0}\nv_mul_f32 v{B+o_ab+1}, {INV2PI}, v{U+1}")
        cmul(a, B + o_c, U + 4, U + 2, B + o_t)
    for m in range(2):
        B = MB[m]; U = B + o_u
        for (o, e) in ((o_w1, 1.0), (o_w8, 8.0), (o_w128, 128.0)):
            lit = {1.0: "1.0", 8.0: "0x41000000", 128.0: "0x43000000"}[e]
            a(f"v_mul_f32 v{U}, {lit}, v{B+o_ab}\nv_mul_f32 v{U+1}, {lit}, v{B+o_ab+1}")
            a(f"v_fract_f32 v{U+1}, v{U+1}")
            a(f"v_exp_f32 v{U}, v{U}\nv_cos_f32 v{U+2}, v{U+1}\nv_sin_f32 v{U+3}, v{U+1}")
            a(f"v_mul_f32 v{B+o}, v{U}, v{U+2}\nv_mul_f32 v{B+o+1}, v{U}, v{U+3}")
    CV = 24
    cvi = [0]
    def put(row, srcs, neg):
        c = CV + 2 * (cvi[0] & 1); cvi[0] += 1
        for m in range(2):
            if srcs[m] is None: a(f"v_mov_b32 v{c+m}, 0x3f80")
            else: a(f"v_cvt_pk_bf16_f32 v{c+m}, v{srcs[m]}, {'-' if neg else ''}v{srcs[m]+1}")
        a(f"ds_write_b64 v{VEW}, v[{c}:{c+1}] offset:{row*E_RS}")
    both = lambda o: [MB[0] + o, MB[1] + o]
    put(0, both(o_c), True)
    cur = o_c
    for j in range(1, 16):
        nx = o_L if cur != o_L else o_t + 2 + 0
        nx = o_L if (j & 1) else o_u + 8
        for m in range(2): cmul(a, MB[m] + nx, MB[m] + cur, MB[m] + o_w8, MB[m] + o_t)
        put(j, both(nx), True); cur = nx
    def Pn(b): return o_P + 2 * (b - 1)
    for m in range(2): a(f"v_mov_b32 v{MB[m]+Pn(1)}, v{MB[m]+o_w1}\nv_mov_b32 v{MB[m]+Pn(1)+1}, v{MB[m]+o_w1+1}")
    put(16, [None, None], False)
    put(17, both(Pn(1)), False)
    for b in range(2, 8):
        for m in range(2): cmul(a, MB[m] + Pn(b), MB[m] + Pn(b - 1), MB[m] + o_w1, MB[m] + o_t)
        put(16 + b, both(Pn(b)), False)
    put(16 + 8, both(o_w128), False)
    for b in range(1, 8):
        for m in range(2): cmul(a, MB[m] + o_u + 2 * (b & 1), MB[m] + o_w128, MB[m] + Pn(b), MB[m] + o_t)
        put(16 + 8 + b, both(o_u + 2 * (b & 1)), False)
    LF = 128; HF = 160; DD = 192
    stamp(a, 2)
    a("s_waitcnt lgkmcnt(0)")
    for ks in range(8): a(f"ds_read_b128 v[{LF+4*ks}:{LF+4*ks+3}], v{VER} offset:{64*ks}")
    def tile_mfma(D):
        for ks in range(8): a(f"ds_read_b128 v[{HF+4*ks}:{HF+4*ks+3}], v{VER} offset:{16*E_RS + 64*ks}")
        a("s_waitcnt lgkmcnt(0)")
        for ks in range(8):
            c = "0" if ks == 0 else f"v[{D}:{D+3}]"
            a(f"v_mfma_f32_16x16x32_bf16 v[{D}:{D+3}], v[{HF+4*ks}:{HF+4*ks+3}], v[{LF+4*ks}:{LF+4*ks+3}], {c}")
    tile_mfma(DD)
    Wc = {1: o_w128}
    def nextW(i):
        d = o_W if (i & 1) == 0 else o_u + 8
        for m in range(2): cmul(a, MB[m] + d, MB[m] + Wc[i - 1], MB[m] + o_w128, MB[m] + o_t)
        Wc[i] = d
    row = 0
    for i in (2, 3):
        nextW(i); put(16 + row, both(Wc[i]), False); row += 1
        for b in (2, 4, 6):
            for m in range(2): cmul(a, MB[m] + o_u + 2 * (row & 1), MB[m] + Wc[i], MB[m] + Pn(b), MB[m] + o_t)
            put(16 + row, both(o_u + 2 * (row & 1)), False); row += 1
    for i in (4, 5, 6, 7):
        nextW(i); put(16 + row, both(Wc[i]), False); row += 1
        for m in range(2): cmul(a, MB[m] + o_u + 2 * (row & 1), MB[m] + Wc[i], MB[m] + Pn(4), MB[m] + o_t)
        put(16 + row, both(o_u + 2 * (row & 1)), False); row += 1
    assert row == 16
    a("v_cmp_eq_u32 vcc, 0, v1\nv_mov_b32 v16, s47\nv_cndmask_b32 v16, 0, v16, vcc")
    a(f"v_add_f32 v{DD}, v{DD}, v16")
    a(f"v_cvt_pk_bf16_f32 v20, v{DD}, v{DD+1}\nv_cvt_pk_bf16_f32 v21, v{DD+2}, v{DD+3}")
    a("v_lshrrev_b32 v16, 1, v15\nv_lshlrev_b32 v16, 8, v16")
    a("v_and_b32 v18, 1, v15\nv_lshlrev_b32 v18, 3, v18\nv_add_u32 v16, v16, v18")
    a("v_lshlrev_b32 v18, 4, v14\nv_add_u32 v16, v16, v18")
    a(f"s_add_u32 s52, s49, 480\nv_add_u32 v16, s52, v16")
    a("ds_write_b64 v16, v[20:21]")
    a("s_waitcnt lgkmcnt(0)")
    tile_mfma(DD + 4)
    for i in range(8, 17):
        nextW(i); put(16 + i - 8, both(Wc[i]), False)
    a(f"s_mul_i32 s53, s24, {TT_CH}\ns_add_u32 s53, s53, {C_TT}")
    a("v_lshlrev_b32 v16, 6, v15\nv_lshlrev_b32 v18, 2, v14\nv_add_u32 v16, v16, v18")
    a("v_add_u32 v18, 2, v16")
    a("v_lshlrev_b32 v19, 6, v15\nv_lshlrev_b32 v20, 1, v14\nv_add_u32 v19, v19, v20")
    a("v_add_u32 v20, 32, v19")
    a("v_cmp_gt_u32 vcc, 2, v15")
    a("v_cndmask_b32 v16, v19, v16, vcc\nv_cndmask_b32 v18, v20, v18, vcc")
    a("v_lshlrev_b32 v16, 2, v16\nv_lshlrev_b32 v18, 2, v18\nv_add_u32 v16, s53, v16\nv_add_u32 v18, s53, v18")
    a(f"ds_write_b64 v16, v[{DD+4}:{DD+5}]\nds_write_b64 v18, v[{DD+6}:{DD+7}]")
    a("s_waitcnt lgkmcnt(0)")
    tile_mfma(DD + 8)
    a("v_lshlrev_b32 v16, 6, v15\nv_add_u32 v16, v16, v14\nv_lshlrev_b32 v16, 2, v16\nv_add_u32 v16, s53, v16")
    for r in range(4): a(f"ds_write_b32 v16, v{DD+8+r} offset:{1024 + 64*r}")
    a("s_waitcnt lgkmcnt(0)")
    a("v_lshlrev_b32 v16, 4, v1\nv_add_u32 v18, s53, v16\nv_add_u32 v19, s52, v16")
    a("s_mov_b64 exec, 0xffffffff")
    a("ds_read_b128 v[32:35], v18\nds_read_b32 v36, v18 offset:16")
    a("s_mov_b64 exec, -1")
    a("v_lshlrev_b32 v20, 3, v1\nv_add_u32 v20, s53, v20")
    a("ds_read_b64 v[40:41], v20 offset:512\nds_read_b32 v42, v20 offset:520")
    a("v_lshlrev_b32 v21, 2, v1\nv_add_u32 v21, s53, v21")
    a("ds_read_b32 v44, v21 offset:1024\nds_read_b32 v45, v21 offset:1028\nds_read_b32 v46, v21 offset:1280\nds_read_b32 v47, v21 offset:1284")
    a("s_waitcnt lgkmcnt(0)")
    a("v_cvt_pk_bf16_f32 v48, v32, v32\nv_cvt_pk_bf16_f32 v49, v33, v34\nv_cvt_pk_bf16_f32 v50, v34, v34\nv_cvt_pk_bf16_f32 v51, v35, v36")
    a("s_mov_b64 exec, 0xffffffff")
    a("ds_write_b128 v19, v[48:51] offset:512")
    a("s_mov_b64 exec, -1")
    a("v_cvt_pk_bf16_f32 v52, v40, v40\nv_cvt_pk_bf16_f32 v53, v40, v41\nv_cvt_pk_bf16_f32 v54, v41, v41\nv_cvt_pk_bf16_f32 v55, v42, v42")
    a("ds_write_b128 v19, v[52:55] offset:1024")
    a("v_and_b32 v22, 1, v1\nv_cmp_eq_u32 vcc, 0, v22")
    for p in range(2):
        t0, t1 = 44 + 2 * p, 45 + 2 * p
        a(f"v_cndmask_b32 v23, v{t1}, v{t0}, vcc")
        o = 56 + 4 * p
        a(f"v_cvt_pk_bf16_f32 v{o}, v{t0}, v{t0}\nv_mov_b32 v{o+1}, v{o}\nv_cvt_pk_bf16_f32 v{o+2}, v23, v{t1}\nv_cvt_pk_bf16_f32 v{o+3}, v{t1}, v{t1}")
        a(f"ds_write_b128 v19, v[{o}:{o+3}] offset:{2048 + 1024*p}")
    stamp(a, 3)
    ACC = 64; AF = 96; BF = 128
    VA = 2; VB = 3
    a(f"s_mul_i32 s54, s24, {U_CH}\ns_add_u32 s54, s54, {C_U + 24}")
    a(f"v_and_b32 v16, 3, v14\nv_sub_u32 v16, 3, v16\nv_mul_u32_u24 v16, {U_CP}, v16")
    a("v_lshlrev_b32 v18, 4, v15\nv_add_u32 v16, v16, v18\nv_lshrrev_b32 v18, 2, v14\nv_lshlrev_b32 v18, 3, v18\nv_sub_u32 v16, v16, v18")
    a(f"v_add_u32 v{VA}, s54, v16")
    a(f"v_lshlrev_b32 v16, 5, v14\nv_lshlrev_b32 v18, 4, v15\nv_add_u32 v16, v16, v18\nv_add_u32 v{VB}, s49, v16")
    for r in range(32): a(f"v_mov_b32 v{ACC+r}, 0")
    a("s_waitcnt lgkmcnt(0)")
    stamp(a, 4)
    a("s_barrier")
    stamp(a, 5)
    steps = [(0, b) for b in range(8)] + [(1, b) for b in range(8)]
    def loads(si):
        ph, b = steps[si]; st = si & 1
        lst = []
        alist = range(0, 4) if ph == 0 else range(4, 8)
        mlist = range(0, 8) if ph == 0 else range(0, 4)
        A_ = [(f"ds_read_b64 v[{AF+16*st+4*(x-alist[0])+2*t}:{AF+16*st+4*(x-alist[0])+2*t+1}], v{VA} offset:{4032 - 64*(8*x+b) + 8*t}", (si, 'a', x)) for x in alist for t in range(2)]
        B_ = [(f"ds_read_b128 v[{BF+32*st+4*m}:{BF+32*st+4*m+3}], v{VB} offset:{448 + 64*(8*m - b)}", (si, 'b', m)) for m in mlist]
        na = len(list(alist))
        for i in range(max(na, len(B_))):
            if i < na: lst += A_[2*i:2*i+2]
            if i < len(B_): lst.append(B_[i])
        return lst
    a.lds_reset()
    for ins, tag in loads(0): a.lds(ins, tag)
    for si in range(16):
        ph, b = steps[si]; st = si & 1
        alist = list(range(0, 4) if ph == 0 else range(4, 8))
        mlist = list(range(0, 8) if ph == 0 else range(0, 4))
        nxt = loads(si + 1) if (si < 15 and si != 7) else []
        pairs = [(x, m) for m in mlist for x in alist if x + m <= 7]
        pairs.sort(key=lambda p: (max(p[0] - alist[0], p[1]), p[0]))
        for pi, (x, m) in enumerate(pairs):
            a.lds_wait([(si, 'a', x), (si, 'b', m)])
            nt = x + m
            a(f"v_mfma_f32_16x16x32_bf16 v[{ACC+4*nt}:{ACC+4*nt+3}], v[{AF+16*st+4*(x-alist[0])}:{AF+16*st+4*(x-alist[0])+3}], v[{BF+32*st+4*m}:{BF+32*st+4*m+3}], v[{ACC+4*nt}:{ACC+4*nt+3}]")
            if pi >= 2:
                for _ in range(2 if ph == 1 else 1):
                    if nxt:
                        ins, tag = nxt.pop(0); a.lds(ins, tag)
        while nxt:
            ins, tag = nxt.pop(0); a.lds(ins, tag)
        if si == 7:
            stamp(a, 6)
            a("s_barrier")
            stamp(a, 7)
            for ins, tag in loads(8): a.lds(ins, tag)
    stamp(a, 8)
    a(f"s_lshl_b32 s55, s27, 12\ns_add_u32 s55, s55, {WS_YT}")
    a("v_lshlrev_b32 v16, 5, v14\nv_lshlrev_b32 v18, 3, v15\nv_add_u32 v16, v16, v18")
    for nt in range(8):
        o = AF + 2 * nt
        a(f"v_cvt_pk_bf16_f32 v{o}, v{ACC+4*nt}, v{ACC+4*nt+1}\nv_cvt_pk_bf16_f32 v{o+1}, v{ACC+4*nt+2}, v{ACC+4*nt+3}")
        a(f"buffer_store_dwordx2 v[{o}:{o+1}], v16, s[16:19], s55 offen offset:{512*nt}")
    if PROF: a("s_waitcnt vmcnt(0)")
    stamp(a, 9)
    a(f"s_branch {end_label}")
    a(f"{L('helper')}:")
    a("s_nop 4")
    a("s_sub_u32 s27, s24, 4")
    if ZFLAG:
        a(f"s_cmp_lg_u32 s27, 0\ns_cbranch_scc1 {L('nz')}\ns_cmp_ge_u32 s{s_cw}, {NZ}\ns_cbranch_scc1 {L('nz')}")
        a(f"v_lshlrev_b32 v2, 4, v1\ns_lshl_b32 s28, s{s_cw}, 10\nv_mov_b32 v8, 0\nv_mov_b32 v9, 0\nv_mov_b32 v10, 0\nv_mov_b32 v11, 0")
        a("buffer_store_dwordx4 v[8:11], v2, s[16:19], s28 offen sc0 sc1")
        a("s_waitcnt vmcnt(0)")
        a("v_mov_b32 v2, 0\nv_mov_b32 v3, 1\ns_mov_b64 exec, 1")
        a("global_atomic_add v2, v3, s[38:39] sc1")
        a("s_mov_b64 exec, -1")
        a(f"{L('nz')}:")
    a(f"s_lshl_b32 s28, s27, 18\ns_lshl_b32 s29, s{s_cw}, 3\ns_add_u32 s28, s28, s29")
    a("v_lshlrev_b32 v2, 12, v1")
    X = [[32 + 16 * p + 2 * (r + 3) for r in range(-3, 4)] for p in range(2)]
    for p in range(2):
        a(f"s_add_u32 s30, s28, {p * 1024 * 1024}")
        a("s_mov_b64 exec, 1")
        for r in (-3, -2, -1):
            a(f"s_add_u32 s31, s30, {r * 1024 & 0xffffffff}")
            a(f"v_mov_b32 v3, s31")
            a(f"buffer_load_dwordx2 v[{X[p][r+3]}:{X[p][r+3]+1}], v3, s[8:11], 0 offen")
        a("s_mov_b64 exec, -1")
        for r in range(4):
            a(f"buffer_load_dwordx2 v[{X[p][r+3]}:{X[p][r+3]+1}], v2, s[8:11], s30 offen offset:{r*1024}")
    a(f"v_lshrrev_b32 v4, 1, v1\nv_mul_u32_u24 v4, {U_CP}, v4\nv_and_b32 v5, 1, v1\nv_lshlrev_b32 v5, 4, v5\nv_add_u32 v4, v4, v5\nv_add_u32 v4, {C_U + 4096}, v4")
    a("v_mov_b32 v8, 0\nv_mov_b32 v9, 0\nv_mov_b32 v10, 0\nv_mov_b32 v11, 0")
    a(f"s_cmp_lg_u32 s27, 0\ns_cbranch_scc1 {L('nopad')}")
    a("s_mov_b64 exec, 0xffffffff")
    a("ds_write_b128 v4, v[8:11]")
    a("s_mov_b64 exec, -1")
    a(f"{L('nopad')}:")
    a(f"s_lshl_b32 s31, s27, 9\ns_sub_u32 s31, {C_U + 4088}, s31")
    a("v_lshlrev_b32 v5, 3, v1\nv_sub_u32 v5, s31, v5")
    a("s_mov_b32 s32, 0x05040100\ns_mov_b32 s33, 0x07060302")
    for p in range(2):
        if p == 0: stamp(a, 1)
        a(f"s_waitcnt vmcnt({7 if p == 0 else 0})")
        stamp(a, 2 + 2*p)
        for r in (-3, -2, -1):
            for q in range(2):
                a(f"v_mov_b32_dpp v{X[p][r+3]+q}, v{X[p][r+4+3]+q} wave_shr:1 row_mask:0xf bank_mask:0xf")
        ob = 64
        for ch in range(4):
            q = ch >> 1; sel = 32 + (ch & 1)
            for c in range(4):
                o = ob + 2 * ((ch * 4 + c) % 8)
                r0, r1, r2, r3 = [X[p][3 - c - k + 3] + q for k in range(4)]
                a(f"v_perm_b32 v{o}, v{r1}, v{r0}, s{sel}\nv_perm_b32 v{o+1}, v{r3}, v{r2}, s{sel}")
                a(f"ds_write_b64 v5, v[{o}:{o+1}] offset:{ch*U_CH + c*U_CP - 0}")
        a("s_waitcnt lgkmcnt(0)")
        stamp(a, 3 + 2*p)
        a("s_barrier")
        if p == 0: a("v_subrev_u32 v5, 2048, v5")
    a(f"s_branch {end_label}")

def gen_conv(a, name):
    kernel_begin(a, name)
    a(f"s_cmp_ge_u32 s2, 128\ns_cbranch_scc1 LC_end")
    srd(a, 8, K_U, 0); srd(a, 16, K_WS, 0)
    a("v_lshrrev_b32 v2, 6, v0\ns_nop 0\nv_readfirstlane_b32 s24, v2")
    a("s_and_b32 s3, s2, 7\ns_lshr_b32 s4, s2, 3\ns_lshl_b32 s25, s3, 4\ns_add_u32 s25, s25, s4")
    a("s_waitcnt lgkmcnt(0)")
    srd_fin(a, 8, 2048 * 1024); srd_fin(a, 16, WS_SIZE if not PROF else 0x1000000)
    stamp(a, 0); stamp_rt(a, 10)
    gen_conv_body(a, "LC", 25, "LC_fin")
    a("LC_fin:\ns_mov_b64 exec, -1")
    stamp_rt(a, 11)
    stamp_flush(a, 16, 24, 8)
    a("LC_end:\ns_endpgm")


F_WO = 0
F_KV = 65536
F_Y = F_KV + 34816
F_RED = F_Y + 8192
FIN_LDS = F_RED + 16384
def gen_final_body(a, P, s_tt, s_mt, end_label):
    L = lambda x: f"{P}_{x}"
    a("v_and_b32 v1, 63, v0")
    a("s_and_b32 s27, s24, 1\ns_lshr_b32 s28, s24, 1")
    a("v_lshlrev_b32 v2, 4, v1")
    a("s_lshl_b32 s29, s24, 10")
    for i in range(9):
        if i == 8:
            a(f"s_cmp_ge_u32 s24, 2\ns_cbranch_scc1 {L('kvdone')}")
        a(f"s_add_u32 s30, s29, {WS_KV + i*4096}\ns_add_u32 m0, s29, {F_KV + i*4096}")
        a("buffer_load_dwordx4 v2, s[16:19], s30 offen lds")
    a(f"{L('kvdone')}:")
    PQF = 64
    a(f"s_lshl_b32 s30, s{s_tt}, 1\ns_add_u32 s30, s30, s27\ns_lshl_b32 s30, s30, 15\ns_lshl_b32 s31, s28, 14\ns_add_u32 s30, s30, s31\ns_add_u32 s30, s30, {WS_PQ}")
    a("v_lshrrev_b32 v3, 3, v1\nv_lshlrev_b32 v3, 10, v3\nv_and_b32 v4, 7, v1\nv_bfe_u32 v5, v1, 4, 1\nv_lshlrev_b32 v5, 2, v5\nv_xor_b32 v4, v4, v5\nv_lshlrev_b32 v4, 4, v4\nv_add_u32 v3, v3, v4")
    a(f"s_lshl_b32 s31, s{s_mt}, 7\ns_lshl_b32 s32, s24, 13\ns_add_u32 s31, s31, s32")
    for n in range(16):
        a(f"buffer_load_dwordx4 v[{PQF+4*n}:{PQF+4*n+3}], v2, s[16:19], s30 offen offset:{0}" if False else "")
        if n % 4 == 0:
            pass
    for n in range(16):
        a(f"s_add_u32 s33, s30, {n*1024}")
        a(f"buffer_load_dwordx4 v[{PQF+4*n}:{PQF+4*n+3}], v2, s[16:19], s33 offen")
        a(f"s_add_u32 s33, s31, {n*32768}\ns_add_u32 m0, s29, {F_WO + n*4096}")
        a("buffer_load_dwordx4 v3, s[12:15], s33 offen lds")
    a("v_lshrrev_b32 v5, 3, v1\nv_lshlrev_b32 v5, 12, v5\nv_add_u32 v5, v5, v4")
    a(f"s_lshl_b32 s33, s{s_mt}, 18\ns_lshl_b32 s34, s{s_tt}, 7\ns_add_u32 s33, s33, s34\ns_lshl_b32 s34, s24, 15\ns_add_u32 s33, s33, s34\ns_add_u32 s33, s33, {WS_YT}")
    for n in range(2):
        a(f"s_add_u32 s34, s33, {n*4*8*4096}\ns_add_u32 m0, s29, {F_Y + n*4096}")
        a("buffer_load_dwordx4 v5, s[16:19], s34 offen lds")
    VG = 6
    a(f"v_and_b32 v7, 31, v1\nv_lshlrev_b32 v7, 2, v7\ns_lshl_b32 s33, s{s_tt}, 8\ns_lshl_b32 s34, s27, 7\ns_add_u32 s33, s33, s34\ns_add_u32 s33, s33, {WS_G}")
    a(f"buffer_load_dword v{VG}, v7, s[16:19], s33 offen")
    VKV = 8; VZ = 9; VWO = 10; VY = 11
    a(f"v_lshlrev_b32 v{VKV}, 2, v1\ns_lshl_b32 s33, s28, 14\ns_add_u32 s33, s33, {F_KV}\nv_add_u32 v{VKV}, s33, v{VKV}")
    a(f"v_bfe_u32 v12, v1, 4, 1\nv_lshlrev_b32 v12, 6, v12\nv_lshrrev_b32 v13, 5, v1\nv_lshlrev_b32 v13, 4, v13\nv_add_u32 v12, v12, v13")
    a(f"s_lshl_b32 s33, s28, 10\ns_add_u32 s33, s33, {F_KV + 32768}\nv_add_u32 v{VZ}, s33, v12")
    a("v_lshrrev_b32 v12, 5, v1\nv_lshlrev_b32 v12, 2, v12\nv_bfe_u32 v13, v1, 2, 2\nv_add_u32 v12, v12, v13\nv_lshlrev_b32 v12, 7, v12")
    a("v_bfe_u32 v14, v1, 4, 1\nv_lshlrev_b32 v14, 1, v14\nv_bfe_u32 v15, v1, 1, 1\nv_add_u32 v14, v14, v15")
    a("v_lshrrev_b32 v15, 1, v13\nv_lshlrev_b32 v15, 2, v15\nv_xor_b32 v14, v14, v15")
    a("v_and_b32 v16, 1, v1\nv_lshlrev_b32 v16, 3, v16")
    a(f"v_lshlrev_b32 v17, 4, v14\nv_add_u32 v17, v17, v16\nv_add_u32 v17, v17, v12\ns_lshl_b32 s33, s28, 15\nv_add_u32 v{VWO}, s33, v17")
    a(f"v_xor_b32 v14, 4, v14\nv_lshlrev_b32 v18, 4, v14\nv_add_u32 v18, v18, v16\nv_add_u32 v18, v18, v12\nv_add_u32 v{VWO+9}, s33, v18")
    VWO1 = VWO + 9
    a("v_bfe_u32 v14, v1, 4, 1\nv_lshlrev_b32 v14, 1, v14\nv_bfe_u32 v20, v1, 1, 1\nv_add_u32 v14, v14, v20\ns_lshl_b32 s33, s27, 2\nv_add_u32 v14, s33, v14\nv_xor_b32 v14, v14, v15")
    a(f"v_lshlrev_b32 v14, 4, v14\nv_add_u32 v14, v14, v16\nv_add_u32 v14, v14, v12\ns_lshl_b32 s33, s28, 12\ns_add_u32 s33, s33, {F_Y}\nv_add_u32 v{VY}, s33, v14")
    stamp(a, 1)
    a("s_waitcnt vmcnt(0)")
    stamp(a, 2)
    a("s_barrier")
    stamp(a, 3)
    ACC = 32
    XR = 128
    AFR = 144
    DN = 160
    OF = 192
    WF = 200
    a(f"s_mov_b32 s31, {EPS}")
    for hp in range(8):
        st = hp & 1
        for r in range(8): a(f"ds_read_b32 v{XR+r}, v{VKV} offset:{hp*2048 + r*256}")
        a(f"ds_read_b128 v[{XR+8}:{XR+11}], v{VZ} offset:{hp*128}\nds_read_b128 v[{XR+12}:{XR+15}], v{VZ} offset:{hp*128 + 32}")
        a("s_waitcnt lgkmcnt(0)")
        X = AFR + 8 * st; Z = X + 4
        for j in range(4):
            a(f"v_cvt_pk_bf16_f32 v{X+j}, v{XR+2*j}, v{XR+2*j+1}\nv_cvt_pk_bf16_f32 v{Z+j}, v{XR+8+2*j}, v{XR+8+2*j+1}")
        for j in range(4):
            a(f"v_permlane16_swap_b32 v{X+j}, v{Z+j}")
        for hh2 in range(2):
            h = 2 * hp + hh2
            Af = X if hh2 == 0 else Z
            D = DN + 16 * hh2
            a(f"v_mfma_f32_32x32x16_bf16 v[{D}:{D+15}], v[{Af}:{Af+3}], v[{PQF+4*h}:{PQF+4*h+3}], 0")
            for mt_ in range(2):
                w = WF + 8 * hh2 + 4 * mt_
                ad = VWO if mt_ == 0 else VWO1
                for t in range(2):
                    a(f"ds_read_b64_tr_b16 v[{w+2*t}:{w+2*t+1}], v{ad} offset:{h*2048 + t*1024}")
        for hh2 in range(2):
            h = 2 * hp + hh2
            D = DN + 16 * hh2; O = OF + 4 * hh2
            a(f"v_add_f32 v{D+8}, s31, v{D+8}\nv_rcp_f32 v{D+8}, v{D+8}")
            for r in range(8): a(f"v_mul_f32 v{D+r}, v{D+r}, v{D+8}")
            for j in range(4): a(f"v_cvt_pk_bf16_f32 v{O+j}, v{D+2*j}, v{D+2*j+1}")
        a("s_waitcnt lgkmcnt(0)")
        for hh2 in range(2):
            O = OF + 4 * hh2
            for mt_ in range(2):
                w = WF + 8 * hh2 + 4 * mt_
                first = (hp == 0 and hh2 == 0)
                c = "0" if first else f"v[{ACC+16*mt_}:{ACC+16*mt_+15}]"
                a(f"v_mfma_f32_32x32x16_bf16 v[{ACC+16*mt_}:{ACC+16*mt_+15}], v[{w}:{w+3}], v[{O}:{O+3}], {c}")
    stamp(a, 4)
    a(f"v_lshlrev_b32 v12, 4, v1\ns_lshl_b32 s33, s24, 12\ns_add_u32 s33, s33, {F_RED}\nv_add_u32 v13, s33, v12")
    a(f"s_xor_b32 s34, s24, 2\ns_lshl_b32 s34, s34, 12\ns_add_u32 s34, s34, {F_RED}\nv_add_u32 v14, s34, v12")
    KEEP = 64; SEND = 80
    a(f"s_cmp_eq_u32 s28, 0\ns_cbranch_scc1 {L('hh0')}")
    for r in range(16): a(f"v_mov_b32 v{KEEP+r}, v{ACC+16+r}\nv_mov_b32 v{SEND+r}, v{ACC+r}")
    a(f"s_branch {L('hhj')}\n{L('hh0')}:\ns_nop 7\ns_nop 7")
    for r in range(16): a(f"v_mov_b32 v{KEEP+r}, v{ACC+r}\nv_mov_b32 v{SEND+r}, v{ACC+16+r}")
    a(f"{L('hhj')}:")
    for i in range(4): a(f"ds_write_b128 v13, v[{SEND+4*i}:{SEND+4*i+3}] offset:{1024*i}")
    YR = 96
    for g4 in range(4): a(f"ds_read_b64_tr_b16 v[{YR+2*g4}:{YR+2*g4+1}], v{VY} offset:{g4*1024}")
    a("s_waitcnt lgkmcnt(0)\ns_barrier")
    RX = 112
    for i in range(4): a(f"ds_read_b128 v[{RX+4*i}:{RX+4*i+3}], v14 offset:{1024*i}")
    a(f"v_sub_f32 v7, 1.0, v{VG}")
    a("s_waitcnt lgkmcnt(0)")
    OUTR = 128
    for g4 in range(4):
        for q in range(2):
            ylo = 136; yhi = 137
            a(f"v_lshlrev_b32 v{ylo}, 16, v{YR+2*g4+q}\nv_and_b32 v{yhi}, 0xffff0000, v{YR+2*g4+q}")
            r0 = 4 * g4 + 2 * q
            a(f"v_add_f32 v{KEEP+r0}, v{KEEP+r0}, v{RX+r0}\nv_add_f32 v{KEEP+r0+1}, v{KEEP+r0+1}, v{RX+r0+1}")
            a(f"v_mul_f32 v{KEEP+r0}, v7, v{KEEP+r0}\nv_mul_f32 v{KEEP+r0+1}, v7, v{KEEP+r0+1}")
            a(f"v_fma_f32 v{KEEP+r0}, v{VG}, v{ylo}, v{KEEP+r0}\nv_fma_f32 v{KEEP+r0+1}, v{VG}, v{yhi}, v{KEEP+r0+1}")
            a(f"v_cvt_pk_bf16_f32 v{OUTR+2*g4+q}, v{KEEP+r0}, v{KEEP+r0+1}")
    a("v_and_b32 v12, 31, v1\nv_lshlrev_b32 v12, 10, v12\nv_lshrrev_b32 v13, 5, v1\nv_lshlrev_b32 v13, 3, v13\nv_add_u32 v12, v12, v13")
    a(f"s_lshl_b32 s33, s{s_tt}, 16\ns_lshl_b32 s34, s27, 15\ns_add_u32 s33, s33, s34\ns_lshl_b32 s34, s{s_mt}, 7\ns_add_u32 s33, s33, s34\ns_lshl_b32 s34, s28, 6\ns_add_u32 s33, s33, s34")
    for g4 in range(4):
        a(f"buffer_store_dwordx2 v[{OUTR+2*g4}:{OUTR+2*g4+1}], v12, s[20:23], s33 offen offset:{16*g4}")
    stamp(a, 5)
    if PROF: a("s_waitcnt vmcnt(0)")
    stamp(a, 6)

def gen_final(a, name):
    kernel_begin(a, name)
    a(f"s_cmp_ge_u32 s2, 256\ns_cbranch_scc1 LF_end")
    srd(a, 12, K_WO, 0); srd(a, 16, K_WS, 0); srd(a, 20, K_OUT, 0)
    a("v_lshrrev_b32 v2, 6, v0\ns_nop 0\nv_readfirstlane_b32 s24, v2")
    a("s_and_b32 s3, s2, 7\ns_lshr_b32 s4, s2, 3\ns_lshl_b32 s25, s3, 2\ns_lshr_b32 s5, s4, 3\ns_add_u32 s25, s25, s5\ns_and_b32 s26, s4, 7")
    a("s_waitcnt lgkmcnt(0)")
    srd_fin(a, 12, 512 * 1024); srd_fin(a, 16, WS_SIZE if not PROF else 0x1000000); srd_fin(a, 20, 2048 * 1024)
    stamp(a, 0); stamp_rt(a, 10)
    gen_final_body(a, "LF", 25, 26, "LF_fin")
    a("LF_fin:\ns_mov_b64 exec, -1")
    stamp_rt(a, 11)
    stamp_flush(a, 16, 24, 4)
    a("LF_end:\ns_endpgm")


def gen_k1(a, name):
    kernel_begin(a, name)
    a(f"s_cmp_ge_u32 s2, 256\ns_cbranch_scc1 LK_end")
    srd(a, 8, K_U, 0); srd(a, 12, K_WQKV, 0); srd(a, 16, K_WS, 0); srd(a, 20, K_GW, 0)
    a(f"s_load_dwordx2 s[38:39], s[0:1], {K_DBG}")
    a("v_lshrrev_b32 v2, 6, v0\ns_nop 0\nv_readfirstlane_b32 s24, v2")
    a("s_and_b32 s3, s2, 7\ns_lshr_b32 s4, s2, 3")
    a("s_waitcnt lgkmcnt(0)")
    srd_fin(a, 8, 2048 * 1024); srd_fin(a, 12, 512 * 3072); srd_fin(a, 16, WS_SIZE if not PROF else 0x1000000); srd_fin(a, 20, 1024)
    stamp(a, 0); stamp_rt(a, 10)
    a("s_cmp_ge_u32 s4, 16\ns_cbranch_scc1 LK_conv")
    a("s_lshr_b32 s25, s3, 1\ns_lshl_b32 s25, s25, 2\ns_lshr_b32 s5, s4, 2\ns_add_u32 s25, s25, s5")
    a("s_and_b32 s26, s3, 1\ns_lshl_b32 s26, s26, 2\ns_and_b32 s5, s4, 3\ns_add_u32 s26, s26, s5")
    gen_gemm_body(a, "LG", 25, 26, "LK_fin")
    a("LK_conv:\ns_nop 4")
    a("s_lshl_b32 s25, s3, 4\ns_add_u32 s25, s25, s4\ns_sub_u32 s25, s25, 16")
    gen_conv_body(a, "LC", 25, "LK_fin")
    a("LK_fin:\ns_mov_b64 exec, -1")
    stamp_rt(a, 11)
    stamp_flush(a, 16, 24, 8)
    a("LK_end:\ns_endpgm")

def main(which, out):
    global PROF, ZFLAG
    if which.endswith("+p"): PROF = True; which = which[:-2]
    a = A()
    if which == "gemm":
        file_begin(a, [("zero_kernel", 9, 256, 0), ("gemm_kernel", 128, 512, GEMM_LDS)])
        gen_zero(a, "zero_kernel"); gen_gemm(a, "gemm_kernel")
        kernel_desc(a, "zero_kernel", 8, 16); kernel_desc(a, "gemm_kernel", 168 if not PROF else 256, 48 if not PROF else 96)
    if which == "conv":
        file_begin(a, [("conv_kernel", 128, 512, CONV_LDS)])
        gen_conv(a, "conv_kernel")
        kernel_desc(a, "conv_kernel", 208 if not PROF else 256, 64 if not PROF else 96)
    if which == "fin":
        file_begin(a, [("final_kernel", 256, 256, FIN_LDS)])
        gen_final(a, "final_kernel"); kernel_desc(a, "final_kernel", 216 if not PROF else 256, 48 if not PROF else 96)
    if which == "two":
        ZFLAG = True
        file_begin(a, [("k1_kernel", 256, 512, CONV_LDS), ("final_kernel", 256, 256, FIN_LDS)])
        gen_k1(a, "k1_kernel"); pf = PROF; PROF = False; gen_final(a, "final_kernel"); PROF = pf
        kernel_desc(a, "k1_kernel", 208 if not PROF else 256, 64 if not PROF else 96); kernel_desc(a, "final_kernel", 216, 48)
    if which == "all4":
        file_begin(a, [("zero_kernel", 9, 256, 0), ("gemm_kernel", 128, 512, GEMM_LDS), ("conv_kernel", 128, 512, CONV_LDS), ("final_kernel", 256, 256, FIN_LDS)])
        gen_zero(a, "zero_kernel"); gen_gemm(a, "gemm_kernel"); gen_conv(a, "conv_kernel"); gen_final(a, "final_kernel")
        kernel_desc(a, "zero_kernel", 8, 16); kernel_desc(a, "gemm_kernel", 168, 48); kernel_desc(a, "conv_kernel", 208, 64); kernel_desc(a, "final_kernel", 216 if not PROF else 256, 48 if not PROF else 96)
    open(out, "w").write(a.text())
if __name__ == "__main__":
    main(sys.argv[1], sys.argv[2])
```
